```python
import torch

def _softmax(x, axis=-1):
    return torch.softmax(x, dim=axis)
def _gelu(x):
    return torch.nn.functional.gelu(x, approximate="tanh")
def _silu(x):
    return torch.nn.functional.silu(x)
def _sigmoid(x):
    return torch.sigmoid(x)
def _layernorm(x, axis=-1, eps=1e-5):
    m = x.mean(dim=axis, keepdim=True)
    v = x.var(dim=axis, keepdim=True, unbiased=False)
    return (x - m) / torch.sqrt(v + eps)
def _scatter_add(tgt, idx, src, axis=0):
    return tgt.clone().index_add_(axis, idx, src)
def _segment_sum(src, seg, n):
    out = torch.zeros((n,) + src.shape[1:], dtype=src.dtype)
    return out.index_add_(0, seg, src)
def _pad(x, pw):
    flat = tuple(v for pair in reversed(pw) for v in pair)
    return torch.nn.functional.pad(x, flat)

kernel_name = 'gated_mix__sliding_local_dilated__glu_gated_glu__prompt'

def setup_inputs():

    _w = (lambda a: (lambda t: t.to(torch.bfloat16) if t.is_floating_point() else t)(torch.as_tensor(a)))
    def _A_setup():
        B, S, D = 1, 2048, 576
        return {
            "x": _w((lambda *s: torch.randn(*s, dtype=torch.bfloat16) * 0.05)(B, S, D)),
            "wqkv": _w((lambda *s: torch.randn(*s, dtype=torch.bfloat16) * 0.8)(D, 3 * D)),
            "wo": _w((lambda *s: torch.randn(*s, dtype=torch.bfloat16) * 0.05)(D, D)),
        }
    _A_in = _A_setup()

    def _B_setup():
        B, S, D, F = 1, 2048, 576, 4608
        return {
            "x": _w((lambda *s: torch.randn(*s, dtype=torch.bfloat16) * 0.05)(B, S, D)),
            "w_gate": _w((lambda *s: torch.randn(*s, dtype=torch.bfloat16) * 1.6)(D, F)),
            "w_up": _w((lambda *s: torch.randn(*s, dtype=torch.bfloat16) * 0.1)(D, F)),
            "w_down": _w((lambda *s: torch.randn(*s, dtype=torch.bfloat16) * 0.1)(F, D)),
        }
    _B_in = _B_setup()

    return {
        "A_x": _A_in["x"],
        "A_wqkv": _A_in["wqkv"],
        "A_wo": _A_in["wo"],
        "B_x": _B_in["x"],
        "B_w_gate": _B_in["w_gate"],
        "B_w_up": _B_in["w_up"],
        "B_w_down": _B_in["w_down"],
        "gate_w": _w((lambda *s: torch.randn(*s, dtype=torch.bfloat16) * 0.05)(576) * 16.0),
    }

def reference(A_x, A_wqkv, A_wo, B_x, B_w_gate, B_w_up, B_w_down, gate_w):
    def _A_ref(x, wqkv, wo):
        B, S, D = x.shape
        H = 32; Dh = D // H
        W, dil = 8, 2
        qkv = (lambda x, *d: x.permute(*d))((x @ wqkv).reshape(B, S, 3, H, Dh), 2, 0, 3, 1, 4)
        q, k, v = qkv[0], qkv[1], qkv[2]
        scale = Dh ** -0.5
        pos = torch.arange(S)
        off = torch.arange(W) * dil
        idx = pos[:, None] - off[None, :]
        mask = idx >= 0
        idx_c = torch.where(mask, idx, 0).reshape(-1)
        kg = k[:, :, idx_c, :].reshape(B, H, S, W, Dh)
        vg = v[:, :, idx_c, :].reshape(B, H, S, W, Dh)
        logits = torch.einsum("bhsd,bhswd->bhsw", q, kg) * scale
        logits = torch.where(mask[None, None, :, :], logits, -1e9)
        attn = _softmax(logits, axis=-1)
        o = torch.einsum("bhsw,bhswd->bhsd", attn, vg)
        return (lambda x, *d: x.permute(*d))(o, 0, 2, 1, 3).reshape(B, S, D) @ wo

    def _B_ref(x, w_gate, w_up, w_down):
        g = torch.einsum("bsd,df->bsf", x, w_gate)
        u = torch.einsum("bsd,df->bsf", x, w_up)
        h = _sigmoid(g) * u
        return torch.einsum("bsf,fd->bsd", h, w_down)

    x = A_x
    g = _sigmoid((x * gate_w).sum(-1, keepdims=True))
    a = _A_ref(x, A_wqkv, A_wo)
    b = _B_ref(x, B_w_gate, B_w_up, B_w_down)
    return g * a + (1 - g) * b
```

```python
class Asm:
    def __init__(self):
        self.l = []
        self.vm = []
        self.uid = 0
    def __call__(self, s):
        for ln in s.split("\n"):
            ln = ln.strip()
            if ln: self.l.append("    " + ln)
    def label(self, n): self.l.append(n + ":")
    def comment(self, s): self.l.append("    ; " + s)
    def newlabel(self, p="L"):
        self.uid += 1
        return f"{p}_{self.uid}"
    def vmem(self, s, tag=None):
        self(s); self.vm.append(tag)
    def vwait(self, pred):
        last = -1
        for i, t in enumerate(self.vm):
            if pred(t): last = i
        if last < 0: return
        n = len(self.vm) - 1 - last
        assert n <= 63, n
        self(f"s_waitcnt vmcnt({n})")
        self.vm = self.vm[last + 1:]
    def vwait_all(self):
        self("s_waitcnt vmcnt(0)"); self.vm = []
    def text(self): return "\n".join(self.l) + "\n"

def vr(b, n=1):
    return f"v{b}" if n == 1 else f"v[{b}:{b+n-1}]"
def sr(b, n=1):
    return f"s{b}" if n == 1 else f"s[{b}:{b+n-1}]"
```

```python
from asmlib import *
BLK = 7040
AW = 8 * BLK
AX = 144 * 128
AST = AW + AX
PITCH = 304
PART = 144 * PITCH
WOS = 18432
WO0 = 3 * PART
WOSLOT = [WO0 + 13824, PART, PART + WOS, PART + 2 * WOS, PART + 3 * WOS, PART + 4 * WOS]
WOSLOT[0] = 163840 - WOS - 256
assert WOSLOT[5] + WOS <= WOSLOT[0]

def att_role(a, G):
    S_X, S_W, S_WO, S_WS, S_DBG = G.S_X, G.S_W, G.S_WD, G.S_WS, G.S_DBG
    sT0, sT1, sW4, sGRP, sWAVE, sHG = G.sT0, G.sT1, G.sW4, G.sGRP, G.sWAVE, G.sKQ
    sM = G.sM2
    sWSO, sWLDS, sXSO, sXLDS = G.sWSO, G.sWLDS, G.sXSO, G.sXLDS
    sA, sB_ = G.sDW, G.sDX
    sLOOP, sBUF, sK = G.sLOOP, G.sWI, G.sXI
    sOFF = 88
    sFA = G.sFHP
    sX2 = G.sHB
    L = G.vLANE
    vWP = 8
    vXP = 2
    vAa, vBa = 4, 5
    AF, BF = 16, 72
    ACC = 116
    a.vm = []
    a(f"s_and_b32 s{sT0}, s{sT0}, 1\n s_lshl_b32 s{sT0}, s{sT0}, 3\n s_sub_u32 s{sM}, s{sT1}, 24\n s_add_u32 s{sM}, s{sM}, s{sT0}")
    for i in range(7):
        a(f"v_add_u32 v56, {64*i}, v{L}")
        G.divmod_small(a, 57, 58, 56, 54, sA)
        G.divmod_small(a, 56, 59, 58, 18, sA)
        a(f"s_mov_b32 s{sA}, 3456\n v_mul_u32_u24 v57, s{sA}, v57\n s_mov_b32 s{sA}, 1152\n v_mad_u32_u24 v57, v56, s{sA}, v57\n v_lshl_add_u32 v{vWP+i}, v59, 4, v57")
    a(f"v_lshrrev_b32 v56, 3, v{L}\n v_and_b32 v57, 7, v{L}\n v_lshrrev_b32 v58, 1, v56")
    a(f"s_mov_b32 s{sA}, 1152\n v_mul_u32_u24 v56, s{sA}, v56\n v_xor_b32 v57, v57, v58")
    a(f"v_lshl_add_u32 v{vXP}, v57, 4, v56\n v_xor_b32 v57, 4, v57\n v_lshl_add_u32 v{vXP+1}, v57, 4, v56")
    a(f"s_mul_i32 s{sWSO}, s{sWAVE}, {8*3456}\n s_mul_i32 s{sA}, s{sHG}, 288\n s_add_u32 s{sWSO}, s{sWSO}, s{sA}\n s_mul_i32 s{sWLDS}, s{sWAVE}, {BLK}")
    a(f"s_lshl_b32 s{sXSO}, s{sM}, 7\n s_lshl_b32 s{sA}, s{sWAVE}, 4\n s_add_u32 s{sXSO}, s{sXSO}, s{sA}\n s_mul_i32 s{sXSO}, s{sXSO}, 1152")
    a(f"s_lshl_b32 s{sXLDS}, s{sWAVE}, 11\n s_add_u32 s{sXLDS}, s{sXLDS}, {AW + 2048}")
    a(f"s_lshl_b32 s{sX2}, s{sM}, 7\n s_lshl_b32 s{sA}, s{sWAVE}, 3\n s_add_u32 s{sX2}, s{sX2}, s{sA}\n s_sub_i32 s{sX2}, s{sX2}, 16\n s_max_i32 s{sX2}, s{sX2}, 0\n s_mul_i32 s{sX2}, s{sX2}, 1152")
    a(f"s_cmp_eq_u32 s{sWAVE}, 1\n s_cselect_b64 vcc, -1, 0\n v_cndmask_b32 v15, v{vXP}, v{vXP+1}, vcc")
    a("s_waitcnt lgkmcnt(0)")
    G.srd(a, S_X, 64, 65, 2048 * 1152)
    G.srd(a, S_W, 66, 67, 576 * 3456)
    G.srd(a, S_WO, 68, 69, 576 * 1152)
    G.srd(a, S_DBG, 82, 83, 256)
    G.srd(a, S_WS, 84, 85, G.WS_SIZE)

    def dma_stage():
        a(f"s_mul_i32 s{sA}, s{sK}, {64*3456}\n s_add_u32 s{sA}, s{sA}, s{sWSO}\n s_add_u32 s{sB_}, s{sWLDS}, s{sBUF}")
        for i in range(7):
            if i == 6: a("s_mov_b32 exec_hi, 0xffff")
            a(f"s_add_u32 m0, s{sB_}, {1024*i}\n s_nop 0")
            a(f"buffer_load_dwordx4 v{vWP+i}, s[{S_W}:{S_W+3}], s{sA} offen lds")
        a("s_mov_b32 exec_hi, -1")
        a(f"s_lshl_b32 s{sT0}, s{sK}, 7\n s_add_u32 s{sA}, s{sXSO}, s{sT0}\n s_add_u32 s{sB_}, s{sXLDS}, s{sBUF}")
        for i in range(2):
            a(f"s_add_u32 m0, s{sB_}, {1024*i}\n s_add_u32 s{sT1}, s{sA}, {8*1152*i}")
            a(f"buffer_load_dwordx4 v{vXP+i}, s[{S_X}:{S_X+3}], s{sT1} offen lds")
        lab = a.newlabel("L_nohalo")
        a(f"s_cmp_lt_u32 s{sWAVE}, 2\n s_cbranch_scc0 {lab}")
        a(f"s_lshl_b32 s{sB_}, s{sWAVE}, 10\n s_add_u32 s{sB_}, s{sB_}, s{sBUF}\n s_add_u32 m0, s{sB_}, {AW}\n s_add_u32 s{sT1}, s{sX2}, s{sT0}")
        a(f"buffer_load_dwordx4 v15, s[{S_X}:{S_X+3}], s{sT1} offen lds")
        a.label(lab)
    a(f"s_mov_b32 s{sBUF}, 0\n s_mov_b32 s{sK}, 0")
    dma_stage()
    G.stamp(a, 0)
    a(f"s_lshl_b32 s{sFA}, s{sM}, 2\n s_add_u32 s{sFA}, s{sFA}, s{sW4}\n s_lshl_b32 s{sFA}, s{sFA}, 7\n s_lshl_b32 s{sA}, s{sHG}, 1\n s_add_u32 s{sA}, s{sA}, s{sGRP}\n s_lshl_b32 s{sA}, s{sA}, 2\n s_add_u32 s{sFA}, s{sFA}, s{sA}\n s_add_u32 s{sFA}, s{sFA}, {G.FA_OFF}")
    a(f"v_mov_b32 v60, 0\n s_mov_b64 exec, 1\n buffer_store_dword v60, v60, s[{S_WS}:{S_WS+3}], s{sFA} offen sc1\n s_mov_b64 exec, -1")
    a(f"v_lshrrev_b32 v56, 4, v{L}\n s_mov_b32 s{sA}, {BLK}\n v_mul_u32_u24 v{vAa}, s{sA}, v56\n v_bfe_u32 v57, v{L}, 2, 2\n s_mov_b32 s{sA}, 864\n v_mad_u32_u24 v{vAa}, v57, s{sA}, v{vAa}")
    a(f"v_and_b32 v57, 3, v{L}\n v_lshl_add_u32 v{vAa}, v57, 3, v{vAa}\n s_mul_i32 s{sA}, s{sW4}, 224\n v_add_u32 v{vAa}, s{sA}, v{vAa}")
    a(f"v_and_b32 v57, 15, v{L}\n v_lshrrev_b32 v58, 1, v57\n v_xor_b32 v58, v58, v56\n v_lshlrev_b32 v57, 7, v57\n v_lshl_add_u32 v{vBa}, v58, 4, v57")
    a(f"s_mul_i32 s{sA}, s{sGRP}, {5*2048}\n s_add_u32 s{sA}, s{sA}, {AW}\n v_add_u32 v{vBa}, s{sA}, v{vBa}\n v_xor_b32 v{vBa+1}, 64, v{vBa}")
    a(f"v_lshlrev_b32 v{G.vL4}, 2, v{L}")
    G.zero_regs(a, ACC, 140)
    a("s_waitcnt vmcnt(0)\n s_barrier")
    lab = a.newlabel("L_noat")
    a(f"s_cmp_eq_u32 s{sWAVE}, 0\n s_cbranch_scc0 {lab}")
    a(f"s_and_b32 s{sT0}, s2, 63\n s_lshl_b32 s{sT0}, s{sT0}, 2\n v_mov_b32 v60, 1\n v_mov_b32 v61, s{sT0}\n s_mov_b64 exec, 1")
    a(f"buffer_atomic_add v60, v61, s[{S_DBG}:{S_DBG+3}], 0 offen sc1\n s_mov_b64 exec, -1")
    a.label(lab)
    G.stamp(a, 1)
    def rdA(s, i, rd): a(f"ds_read_b64_tr_b16 {vr(AF+28*s+4*i+2*rd,2)}, v{vAa} offset:{4*s*BLK + 4*rd*864 + 32*i}")
    def rdB(s, t): a(f"ds_read_b128 {vr(BF+20*s+4*t,4)}, v{vBa+s} offset:{2048*t}")
    def mf(s, t, i):
        acc = ACC + 4 * (7 * t + i)
        a(f"v_mfma_f32_16x16x32_bf16 {vr(acc,4)}, {vr(AF+28*s+4*i,4)}, {vr(BF+20*s+4*t,4)}, {vr(acc,4)}")
    a(f"s_mov_b32 s{sLOOP}, 9")
    a.l.append(".p2align 6")
    a.label("L_qkv")
    rdB(0, 0)
    for i in range(7): rdA(0, i, 0); rdA(0, i, 1)
    for t in range(1, 5): rdB(0, t)
    a(f"s_xor_b32 s{sBUF}, s{sBUF}, {AST}\n s_add_u32 s{sK}, s{sK}, 1\n s_cmp_eq_u32 s{sLOOP}, 1\n s_cbranch_scc1 L_qkv_nodma")
    dma_stage()
    a.label("L_qkv_nodma")
    a("s_waitcnt lgkmcnt(0)")
    pend = [("B", 0)] + [("A", i, rd) for i in range(7) for rd in range(2)] + [("B", t) for t in range(1, 5)]
    for t in range(4):
        for i in range(7):
            mf(0, t, i)
            if pend:
                p = pend.pop(0)
                if p[0] == "A": rdA(1, p[1], p[2])
                else: rdB(1, p[1])
    a(f"s_cmp_eq_u32 s{sGRP}, 1\n s_cbranch_scc1 L_qkv_s0")
    for i in range(7): mf(0, 4, i)
    a.label("L_qkv_s0")
    a("s_waitcnt lgkmcnt(0)")
    for t in range(4):
        for i in range(7): mf(1, t, i)
    a(f"s_cmp_eq_u32 s{sGRP}, 1\n s_cbranch_scc1 L_qkv_s1")
    for i in range(7): mf(1, 4, i)
    a.label("L_qkv_s1")
    a(f"s_cmp_eq_u32 s{sBUF}, 0\n s_mov_b32 s{sA}, {AST}\n s_cselect_b32 s{sA}, {(-AST) & 0xffffffff:#x}, s{sA}")
    a(f"v_add_u32 v{vAa}, s{sA}, v{vAa}\n v_add_u32 v{vBa}, s{sA}, v{vBa}\n v_add_u32 v{vBa+1}, s{sA}, v{vBa+1}")
    a(f"s_sub_u32 s{sLOOP}, s{sLOOP}, 1\n s_cmp_lg_u32 s{sLOOP}, 0\n s_waitcnt vmcnt(0)\n s_barrier\n s_cbranch_scc1 L_qkv")
    G.stamp(a, 2)
    a(f"s_lshl_b32 s{sA}, s{sWAVE}, 6\n v_add_u32 v56, s{sA}, v{L}\n v_lshrrev_b32 v56, 4, v56")
    G.divmod_small(a, 57, None, 56, 9, sA, 64)
    a(f"v_and_b32 v57, 1, v57\n v_lshlrev_b32 v57, 2, v57\n v_xor_b32 v57, v57, v{L}\n v_lshlrev_b32 v8, 4, v57")
    a(f"v_add_u32 v56, 512, v{L}\n v_lshrrev_b32 v56, 4, v56")
    G.divmod_small(a, 57, None, 56, 9, sA, 64)
    a(f"v_and_b32 v57, 1, v57\n v_lshlrev_b32 v57, 2, v57\n v_xor_b32 v57, v57, v{L}\n v_lshlrev_b32 v9, 4, v57")
    a(f"s_mul_i32 s{sWSO}, s{sHG}, {144*1152}\n s_lshl_b32 s{sWLDS}, s{sWAVE}, 10\n s_add_u32 s{sXSO}, s{sWSO}, s{sWLDS}")
    a(f"s_mul_i32 s{sXLDS}, s{sWAVE}, 9216\n s_add_u32 s{sXLDS}, s{sXLDS}, 8192")
    def dma_wo(ks):
        slot = WOSLOT[ks % 6]
        for h in range(2):
            a(f"s_add_u32 m0, s{sWLDS}, {slot + 9216*h}\n s_add_u32 s{sT0}, s{sXSO}, {ks*WOS + 9216*h}")
            a(f"buffer_load_dwordx4 v8, s[{S_WO}:{S_WO+3}], s{sT0} offen lds")
        lab = a.newlabel("L_nox")
        a(f"s_cmp_lt_u32 s{sWAVE}, 2\n s_cbranch_scc0 {lab}")
        a(f"s_add_u32 m0, s{sXLDS}, {slot}\n s_add_u32 s{sT0}, s{sWSO}, s{sXLDS}\n s_add_u32 s{sT0}, s{sT0}, {ks*WOS}")
        a(f"buffer_load_dwordx4 v9, s[{S_WO}:{S_WO+3}], s{sT0} offen lds")
        a.label(lab)
    dma_wo(0)
    for i in range(7):
        a(f"s_mul_i32 s{sA}, s{sW4}, 7\n s_add_u32 s{sA}, s{sA}, {i}\n s_mul_i32 s{sB_}, s{sA}, 57\n s_lshr_b32 s{sB_}, s{sB_}, 9")
        a(f"s_mul_i32 s{sT0}, s{sB_}, {PART - 288}\n s_lshl_b32 s{sA}, s{sA}, 5\n s_add_u32 s{sOFF+i}, s{sA}, s{sT0}")
    for x in range(28): assert (x * 57) >> 9 == x // 9
    a(f"v_and_b32 v56, 15, v{L}\n s_mov_b32 s{sA}, {PITCH}\n v_mul_u32_u24 v56, s{sA}, v56\n v_lshrrev_b32 v57, 4, v{L}\n v_lshl_add_u32 v56, v57, 3, v56\n s_mul_i32 s{sA}, s{sGRP}, {5*16*PITCH}\n v_add_u32 v56, s{sA}, v56")
    for i in range(7):
        if i == 6: a(f"s_cmp_eq_u32 s{sW4}, 3\n s_cbranch_scc1 L_qw_done")
        a(f"v_add_u32 v57, s{sOFF+i}, v56")
        for t in range(5):
            if t == 4:
                lab = a.newlabel("L_qw")
                a(f"s_cmp_eq_u32 s{sGRP}, 1\n s_cbranch_scc1 {lab}")
            acc = ACC + 4 * (7 * t + i)
            d = AF + 2 * ((5 * i + t) % 8)
            a(f"v_cvt_pk_bf16_f32 v{d}, v{acc}, v{acc+1}\n v_cvt_pk_bf16_f32 v{d+1}, v{acc+2}, v{acc+3}")
            a(f"ds_write_b64 v57, {vr(d,2)} offset:{16*PITCH*t}")
            if t == 4: a.label(lab)
    a.label("L_qw_done")
    a("s_waitcnt lgkmcnt(0)\n s_barrier")
    G.stamp(a, 3)
    Q, KV, LG = 16, 40, 124
    PB = 140
    O = 150
    a(f"v_lshrrev_b32 v56, 3, v{L}\n s_lshl_b32 s{sA}, s{sWAVE}, 3\n v_add_u32 v56, s{sA}, v56\n v_lshrrev_b32 v57, 1, v56\n v_and_b32 v56, 1, v56\n v_lshl_add_u32 v10, v57, 2, v56")
    a(f"v_and_b32 v56, 7, v{L}\n v_mul_u32_u24 v56, 36, v56\n s_mov_b32 s{sA}, {PITCH}\n v_mad_u32_u24 v11, v10, s{sA}, v56")
    def rdrow(dst, base_v, byte_off):
        assert byte_off % 4 == 0
        o = byte_off // 4
        assert o + 8 <= 255, o
        for e in range(0, 8, 2): a(f"ds_read2_b32 {vr(dst+e,2)}, v{base_v} offset0:{o+e} offset1:{o+e+1}")
        a(f"ds_read_b32 v{dst+8}, v{base_v} offset:{byte_off+32}")
    RS = 10
    Q, KV, LG, PB, O = 16, 36, 126, 142, 150
    a(f"v_add_u32 v12, {16*PITCH}, v11")
    rdrow(Q, 12, 0); rdrow(Q + RS, 12, 2 * PITCH)
    def rdkv(part):
        for i in range(9):
            if i % 2 == 0: a(f"v_add_u32 v13, {part*PART + (2+2*i)*PITCH}, v11")
            rdrow(KV + RS * i, 13, (i % 2) * 2 * PITCH)
    rdkv(1)
    a("s_waitcnt lgkmcnt(0)")
    for qn in range(2):
        for j in range(8):
            i = 7 + qn - j
            d = LG + 8 * qn + j
            a(f"v_mov_b32 v{d}, 0")
    for e in range(9):
        for qn in range(2):
            for j in range(8):
                i = 7 + qn - j
                a(f"v_dot2c_f32_bf16 v{LG+8*qn+j}, v{Q+RS*qn+e}, v{KV+RS*i+e}")
    a("s_nop 2")
    rdkv(2)
    a(f"s_cmp_eq_u32 s{sM}, 0\n s_cbranch_scc0 L_nomask\n v_mov_b32 v222, 0xf149f2ca")
    for qn in range(2):
        for j in range(1, 8):
            if 2 * j - 2 * qn <= 0: continue
            a(f"v_cmp_gt_u32 vcc, {2*j-2*qn}, v10\n s_nop 1\n v_cndmask_b32 v{LG+8*qn+j}, v{LG+8*qn+j}, v222, vcc")
    a.label("L_nomask")
    import math
    c = (18 ** -0.5) * math.log2(math.e)
    import struct
    cbits = struct.unpack("<I", struct.pack("<f", c))[0]
    a(f"s_mov_b32 s{sA}, {cbits:#x}")
    for qn in range(2):
        l = LG + 8 * qn
        mx, sm = 186 + qn, 188 + qn
        a(f"v_max3_f32 v{mx}, v{l}, v{l+1}, v{l+2}\n v_max3_f32 v{mx}, v{mx}, v{l+3}, v{l+4}\n v_max3_f32 v{mx}, v{mx}, v{l+5}, v{l+6}\n v_max_f32 v{mx}, v{mx}, v{l+7}")
        for j in range(8): a(f"v_sub_f32 v{l+j}, v{l+j}, v{mx}")
        for j in range(8): a(f"v_mul_f32 v{l+j}, s{sA}, v{l+j}")
        for j in range(8): a(f"v_exp_f32 v{l+j}, v{l+j}")
        a(f"s_nop 0\n v_add_f32 v{sm}, v{l}, v{l+1}")
        for j in range(2, 8): a(f"v_add_f32 v{sm}, v{sm}, v{l+j}")
        a(f"v_rcp_f32 v{sm}, v{sm}\n s_nop 0")
        for j in range(8): a(f"v_mul_f32 v{l+j}, v{l+j}, v{sm}")
        for pr in range(4):
            i0 = qn + 2 * pr
            a(f"v_cvt_pk_bf16_f32 v{PB+4*qn+pr}, v{l + 7 + qn - i0}, v{l + 7 + qn - i0 - 1}")
    for e in range(36): a(f"v_mov_b32 v{O+e}, 0")
    a(f"s_mov_b32 s{sA}, 0x05040100\n s_mov_b32 s{sB_}, 0x07060302\n s_waitcnt lgkmcnt(0)")
    T = 190
    k = 0
    for qn in range(2):
        for pr in range(4):
            i0 = qn + 2 * pr
            for e in range(9):
                t0 = T + 2 * (k % 16); k += 1
                a(f"v_perm_b32 v{t0}, v{KV+RS*(i0+1)+e}, v{KV+RS*i0+e}, s{sA}\n v_perm_b32 v{t0+1}, v{KV+RS*(i0+1)+e}, v{KV+RS*i0+e}, s{sB_}")
                a(f"v_dot2c_f32_bf16 v{O+18*qn+2*e}, v{t0}, v{PB+4*qn+pr}\n v_dot2c_f32_bf16 v{O+18*qn+2*e+1}, v{t0+1}, v{PB+4*qn+pr}")
    a("s_nop 2")
    for qn in range(2):
        for e in range(9): a(f"v_cvt_pk_bf16_f32 v{Q+RS*qn+e}, v{O+18*qn+2*e}, v{O+18*qn+2*e+1}")
        o = qn * 2 * PITCH // 4
        for e in range(0, 8, 2): a(f"ds_write2_b32 v12, v{Q+RS*qn+e}, v{Q+RS*qn+e+1} offset0:{o+e} offset1:{o+e+1}")
        a(f"ds_write_b32 v12, v{Q+RS*qn+8} offset:{qn*2*PITCH+32}")
    a("s_waitcnt lgkmcnt(0)\n s_barrier")
    G.stamp(a, 4)
    for ks in range(1, 6): dma_wo(ks)
    WACC = 112
    WA, WB = 16, 96
    a(f"v_lshrrev_b32 v56, 5, v{L}\n v_lshlrev_b32 v56, 3, v56\n v_bfe_u32 v57, v{L}, 2, 2\n v_add_u32 v56, v56, v57\n s_mov_b32 s{sA}, 1152\n v_mul_u32_u24 v56, s{sA}, v56")
    a(f"v_bfe_u32 v57, v{L}, 4, 1\n v_lshl_add_u32 v56, v57, 5, v56\n v_and_b32 v57, 3, v{L}\n v_lshl_add_u32 v56, v57, 3, v56\n s_mul_i32 s{sA}, s{sGRP}, 576\n v_add_u32 v56, s{sA}, v56")
    a(f"v_bfe_u32 v57, v{L}, 3, 1\n v_lshlrev_b32 v57, 6, v57\n v_sub_u32 v58, 0, v57\n s_cmp_eq_u32 s{sGRP}, 1\n s_cselect_b64 vcc, -1, 0\n v_cndmask_b32 v57, v57, v58, vcc")
    a(f"v_add_u32 v2, v56, v57\n v_sub_u32 v3, v56, v57")
    bases = [PART, PART + 3 * WOS, WOSLOT[0]]
    regs = [(4, 5), (10, 11), (12, 13)]
    for (re_, ro), b in zip(regs, bases): a(f"v_add_u32 v{re_}, {b}, v2\n v_add_u32 v{ro}, {b}, v3")
    def wo_addr(ks):
        slot = WOSLOT[ks % 6]
        for (rr, b) in sorted(zip(regs, bases), key=lambda t: -t[1]):
            if slot >= b: return rr, slot - b
    a(f"v_and_b32 v56, 31, v{L}\n s_mov_b32 s{sA}, {PITCH}\n v_mul_u32_u24 v6, s{sA}, v56\n v_lshrrev_b32 v56, 5, v{L}\n v_lshl_add_u32 v6, v56, 4, v6\n s_mul_i32 s{sA}, s{sW4}, {32*PITCH}\n s_add_u32 s{sA}, s{sA}, {16*PITCH}\n v_add_u32 v6, s{sA}, v6")
    G.zero_regs(a, WACC, 144)
    def wo_reads(ks):
        rr, off = wo_addr(ks)
        b = ks & 1
        l = [f"ds_read_b128 {vr(WB+4*b,4)}, v6 offset:{32*ks}"]
        for i in range(9):
            for rd in range(2):
                l.append(f"ds_read_b64_tr_b16 {vr(WA+36*b+4*i+2*rd,2)}, v{rr[i & 1]} offset:{off + 4*rd*1152 + 64*i}")
        return l
    for grp3 in range(3):
        a("s_waitcnt vmcnt(0)\n s_barrier")
        if grp3 == 1:
            for ks in range(6, 9): dma_wo(ks)
        for r in wo_reads(3 * grp3): a(r)
        for ks in range(3 * grp3, 3 * grp3 + 3):
            a("s_waitcnt lgkmcnt(0)")
            nxt = wo_reads(ks + 1) if ks % 3 != 2 else []
            b = ks & 1
            for i in range(9):
                acc = WACC + 16 * i
                a(f"v_mfma_f32_32x32x16_bf16 {vr(acc,16)}, {vr(WA+36*b+4*i,4)}, {vr(WB+4*b,4)}, {vr(acc,16)}")
                for _ in range(3 if i == 0 else 2):
                    if nxt: a(nxt.pop(0))
    G.stamp(a, 5)
    a(f"s_mul_i32 s{sA}, s{sM}, 12\n s_add_u32 s{sA}, s{sA}, s{sW4}\n s_lshl_b32 s{sA}, s{sA}, 2\n s_add_u32 s{sA}, s{sA}, s{sHG}\n s_mul_i32 s{sA}, s{sA}, 12288\n s_add_u32 s{sA}, s{sA}, {G.AP_OFF}")
    a("s_nop 7\n s_nop 3")
    off = lambda ng: (ng // 6) * 196608 + (ng % 6) * 2048
    for i in range(9):
        a(f"s_cmp_eq_u32 s{sGRP}, 1\n s_mov_b32 s{sT0}, {off(i)}\n s_cmov_b32 s{sT0}, {off(9+i)}\n s_add_u32 s{sT0}, s{sT0}, s{sA}")
        for rh in range(2):
            R = WACC + 16 * i + 8 * rh
            P = WA + 4 * (2 * i + rh)
            for e in range(4): a(f"v_cvt_pk_bf16_f32 v{P+e}, v{R+2*e}, v{R+2*e+1}")
            a(f"buffer_store_dwordx4 {vr(P,4)}, v{G.vL16}, s[{S_WS}:{S_WS+3}], s{sT0} offen offset:{1024*rh} sc1")
    a("s_waitcnt vmcnt(0)")
    a.vm = []
    G.flag_store(a, sFA, 0)
    G.stamp(a, 6)
```

```python
import sys
sys.path.insert(0, 'dev')
from asmlib import *

NAME = "gated_mix__sliding_local_dilated__glu_gated_glu__prompt"
H_OFF = 0
P_OFF = 0x1400000
AP_OFF = 0x2000000
FL_OFF = 0x3000000
TS_OFF = 0x3100000
WS_SIZE = 0x4000000
FH_OFF = FL_OFF
FP_OFF = FL_OFF + 0x4000
FA_OFF = FL_OFF + 0xA000
XS = 32768
WR = 3 * XS
WSZ = 12320
UOFF = 6176
NW = 5
GATE_LDS = WR + NW * WSZ
LDS_TOTAL = 163840
S3 = 24576
T3SLOT = [0, 1, 5, 2, 3, 4]
PD = 10
BR = 16

S_X, S_W, S_WD, S_WS, S_OUT, S_DBG, S_GW = 8, 12, 16, 20, 24, 28, 32
sWAVE, sW4, sKQ, sM2, sGI, sF, sTH, sNT = 36, 37, 38, 39, 40, 41, 42, 43
sWSO, sWLDS, sXSO, sXLDS, sHB, sNL2E = 44, 45, 46, 47, 48, 49
sT0, sT1 = 50, 51
sLOOP, sWI, sXI, sDW, sDX = 52, 53, 54, 55, 56
sLO, sWDLDS = 57, 58
sGRP = 59
sTS = 60
sHI = 63
sCW, sCX = 86, 87
sWDP = 88
sHSL = 91
sPB = 97
sFHB = 98
sFHP = 99
sSPIN = 100
sOWN = 101
vLANE = 1
vA = 2
vB = 3
vL16 = 7
vDW = 8
vDX = 11
vDD = 13
vAF = 16
vBF = 40
vT = 56
vFLG = 58
vL4 = 59
vACC = 64
vT3A = 16
vT3B = 160
T3ADDR = {(0,0): 2, (0,1): 3, (1,0): 4, (1,1): 5, (2,0): 6, (2,1): 0}

class Cfg:
    ts = False
    att = True

def srd(a, d, lo, hi, size):
    a(f"s_mov_b32 s{d}, s{lo}\n s_and_b32 s{d+1}, s{hi}, 0xffff\n s_mov_b32 s{d+2}, {size:#x}\n s_mov_b32 s{d+3}, 0x20000")

def divmod_small(a, vq, vrm, vsrc, d, tmp_s, rng=1024):
    m = (65536 + d - 1) // d
    for x in range(0, rng):
        assert (x * m) >> 16 == x // d, (d, x)
    a(f"s_mov_b32 s{tmp_s}, {m}\n v_mul_u32_u24 v{vq}, s{tmp_s}, v{vsrc}\n v_lshrrev_b32 v{vq}, 16, v{vq}")
    if vrm is not None:
        if d <= 64: a(f"v_mul_u32_u24 v{vrm}, {d}, v{vq}")
        else: a(f"s_mov_b32 s{tmp_s}, {d}\n v_mul_u32_u24 v{vrm}, s{tmp_s}, v{vq}")
        a(f"v_sub_u32 v{vrm}, v{vsrc}, v{vrm}")

def stamp(a, idx):
    if not Cfg.ts: return
    a(f"s_memtime s[{sTS}:{sTS+1}]\n s_waitcnt lgkmcnt(0)")
    a(f"v_mov_b32 v63, s{sTS}\n v_mov_b32 v62, s{sTS+2}")
    a.vmem(f"buffer_store_dword v63, v62, s[{S_WS}:{S_WS+3}], 0 offen offset:{idx*4}", tag=("ts",))

def lstamp(a, i):
    if Cfg.ts: a(f"s_memtime s[{64+2*i}:{65+2*i}]")
def lflush(a, n, base=8):
    if not Cfg.ts: return
    a(f"s_waitcnt lgkmcnt(0)\n v_mov_b32 v62, s{sTS+2}")
    for i in range(n):
        a(f"v_mov_b32 v63, s{64+2*i}")
        a.vmem(f"buffer_store_dword v63, v62, s[{S_WS}:{S_WS+3}], 0 offen offset:{(base+i)*4}", tag=("ts",))
        a("s_nop 1")

def zero_regs(a, lo, n):
    for r in range(lo, lo + n): a(f"v_mov_b32 v{r}, 0")

def flag_store(a, sbase, imm, tag=None):
    a(f"v_mov_b32 v60, 1\n v_mov_b32 v61, 0\n s_add_u32 s{sT1}, s{sbase}, {imm}")
    a("s_mov_b64 exec, 1")
    a.vmem(f"buffer_store_dword v60, v61, s[{S_WS}:{S_WS+3}], s{sT1} offen sc1", tag=tag)
    a("s_mov_b64 exec, -1")

def flag_issue(a, srd_, soff, tag):
    a.vmem(f"buffer_load_dword v{vFLG}, v{vL4}, s[{srd_}:{srd_+3}], {soff} offen sc1", tag=tag)

def flag_check(a, srd_, soff, tag, val, mask):
    ok, spin = a.newlabel("L_ok"), a.newlabel("L_spin")
    a.vwait(lambda t: t == tag)
    a(f"s_mov_b32 s{sSPIN}, 0x20000")
    a.label(spin)
    a(f"v_cmp_ne_u32 vcc, {val}, v{vFLG}")
    a(f"s_and_b32 s{sT0}, vcc_lo, {mask & 0xffffffff:#x}\n s_and_b32 s{sT1}, vcc_hi, {mask >> 32:#x}\n s_or_b32 s{sT0}, s{sT0}, s{sT1}\n s_cbranch_scc0 {ok}")
    a(f"s_sub_u32 s{sSPIN}, s{sSPIN}, 1\n s_cbranch_scc1 {ok}\n s_sleep 1")
    a(f"buffer_load_dword v{vFLG}, v{vL4}, s[{srd_}:{srd_+3}], {soff} offen sc1\n s_waitcnt vmcnt(0)\n s_branch {spin}")
    a.label(ok)

def fh_mask(st): return ((1 << 12) - 1) << (12 * st)

def dma_W(a, st):
    ps, tt = st // 18, st % 18
    slot = st % NW
    for i in range(3):
        a(f"s_add_u32 m0, s{sWLDS}, {slot*WSZ + 1024*i}")
        a(f"s_add_u32 s{sT0}, s{sWSO}, {32*tt*9216 + 192*ps}")
        a.vmem(f"buffer_load_dwordx4 v{vDW+i}, s[{S_W}:{S_W+3}], s{sT0} offen lds", tag=("W", st))

def dma_X(a, slab, hh):
    ks = slab % 9
    slot = slab % 3
    for i in range(4):
        a(f"s_add_u32 m0, s{sXLDS}, {slot*XS + hh*16384 + 1024*i}")
        a(f"s_add_u32 s{sT0}, s{sXSO}, {(128*hh + 8*i)*1152 + ks*128}")
        a.vmem(f"buffer_load_dwordx4 v{vDX+(i&1)}, s[{S_X}:{S_X+3}], s{sT0} offen lds", tag=("X", slab))

def t3_blk(n):
    u, s = n // 4, n % 4
    part, aa, p = u // 9, (u % 9) // 3, u % 3
    return part, aa, 2 * p + (s >> 1), s & 1

def dma_D(a, u):
    part, aa, p = u // 9, (u % 9) // 3, u % 3
    slot = T3SLOT[u % 6]
    for i in range(6):
        a(f"s_add_u32 m0, s{sWDLDS}, {slot*S3 + 1024*i}")
        a(f"s_add_u32 s{sT0}, s{sWDP+p}, {(96*part + 16*aa + 8*(i//3))*1152}")
        a.vmem(f"buffer_load_dwordx4 v{vDD+(i%3)}, s[{S_WD}:{S_WD+3}], s{sT0} offen lds", tag=("D", u))
D_ISSUE = {0: 32, 1: 34, 2: 34, 3: 36, 4: 36, 5: 37}
for _u in range(6, 18): D_ISSUE[_u] = 36 + _u - 5

def need_of(tag):
    if tag is None: return 10**9
    if tag[0] == "W": return max(tag[1] - 1, 0)
    if tag[0] == "X": return max(2 * tag[1] - 1, 0)
    if tag[0] == "D": return 36 + tag[1] - 1
    return 10**9

def helper_dma(a, t):
    if t + 4 < 36: dma_W(a, t + 4)
    slab = t // 2 + 2
    if slab < 18: dma_X(a, slab, t & 1)
    for u in range(18):
        if D_ISSUE[u] == t: dma_D(a, u)

def helper_wait(a, t):
    a.vwait(lambda tg: need_of(tg) <= t + 1)

def read_A(a, buf, aa, rd, s):
    r = vAF + 12 * buf + 4 * aa + 2 * rd
    a(f"ds_read_b64_tr_b16 {vr(r,2)}, v{vA} offset:{(16*s + 4*rd)*192 + aa*32}")
def read_B(a, j, s4):
    a(f"ds_read_b128 {vr(vBF+4*j,4)}, v{vB+s4} offset:{4096*j}")

def pass_preload(a):
    order = [("A",0,0),("A",0,1),("B",0),("A",1,0),("A",1,1),("B",1),("A",2,0),("A",2,1),("B",2),("B",3)]
    for o in order:
        if o[0] == "A": read_A(a, 0, o[1], o[2], 0)
        else: read_B(a, o[1], 0)

def adv_W(a):
    a(f"s_add_u32 s{sWI}, s{sWI}, 1\n s_cmp_eq_u32 s{sWI}, {NW}\n s_cselect_b32 s{sDW}, {(-(NW-1)*WSZ) & 0xffffffff:#x}, s{sCW}\n s_cselect_b32 s{sWI}, 0, s{sWI}")
def adv_X(a):
    a(f"s_add_u32 s{sXI}, s{sXI}, 1\n s_cmp_eq_u32 s{sXI}, 3\n s_cselect_b32 s{sDX}, {(-2*XS) & 0xffffffff:#x}, s{sCX}\n s_cselect_b32 s{sXI}, 0, s{sXI}")

def pass_loop(a):
    a(f"s_mov_b32 s{sLOOP}, 9")
    a.l.append(".p2align 6")
    a.label("L_pass")
    waits = {0: 7, 1: 6, 2: 4, 6: 7, 9: 9}
    gaps = {0: ("A",0,0), 1: ("A",0,1), 2: ("B",0), 3: ("A",1,0), 4: ("A",1,1), 5: ("B",1), 6: ("A",2,0), 7: ("A",2,1), 8: ("B",2), 11: ("B",3)}
    for s in range(4):
        buf = s & 1
        ns = (s + 1) & 3
        nsub = ns & 1
        for m in range(12):
            j, aa = m // 3, m % 3
            if m in waits: a(f"s_waitcnt lgkmcnt({waits[m]})")
            acc = vACC + 16 * (aa * 4 + j)
            a(f"v_mfma_f32_32x32x16_bf16 {vr(acc,16)}, {vr(vAF+12*buf+4*aa,4)}, {vr(vBF+4*j,4)}, {vr(acc,16)}")
            if m in gaps:
                g = gaps[m]
                if g[0] == "A": read_A(a, buf ^ 1, g[1], g[2], nsub)
                else: read_B(a, g[1], ns)
            if m == 9 and s in (0, 2):
                adv_W(a)
                a(f"v_add_u32 v{vA}, s{sDW}, v{vA}")
            if m == 9 and s == 1:
                adv_X(a)
                a(f"v_add_u32 v{vB+0}, s{sDX}, v{vB+0}\n v_add_u32 v{vB+1}, s{sDX}, v{vB+1}")
            if m == 9 and s == 3:
                a(f"v_add_u32 v{vB+2}, s{sDX}, v{vB+2}\n v_add_u32 v{vB+3}, s{sDX}, v{vB+3}")
        if s == 1:
            a("s_waitcnt vmcnt(0)\n s_barrier")
        if s == 3:
            a(f"s_sub_u32 s{sLOOP}, s{sLOOP}, 1\n s_cmp_lg_u32 s{sLOOP}, 0\n s_waitcnt vmcnt(0)\n s_barrier\n s_cbranch_scc1 L_pass")
    a("s_waitcnt lgkmcnt(0)")

def epi_unit(a, ps, aa, j):
    R = vACC + 16 * (aa * 4 + j)
    T = vAF
    P = vBF + 4 * ((aa * 4 + j) & 3)
    for e in range(8): a(f"v_mul_f32 v{T+e}, s{sNL2E}, v{R+e}")
    for e in range(8): a(f"v_exp_f32 v{T+e}, v{T+e}")
    for e in range(8): a(f"v_add_f32 v{T+e}, 1.0, v{T+e}")
    for e in range(8): a(f"v_rcp_f32 v{T+e}, v{T+e}")
    for e in range(8): a(f"v_mul_f32 v{T+e}, v{R+8+e}, v{T+e}")
    for e in range(4): a(f"v_cvt_pk_bf16_f32 v{P+e}, v{T+2*e}, v{T+2*e+1}")
    a(f"s_add_u32 s{sT1}, s{sHB}, {ps*6*8192 + aa*8192 + j*1024}")
    a.vmem(f"buffer_store_dwordx4 {vr(P,4)}, v{vL16}, s[{S_WS}:{S_WS+3}], s{sT1} offen sc1", tag=("H", ps, aa))

def t3_readA(a, q):
    n, ng = q // 6, q % 6
    if n >= 72: return
    u, s_ = n // 4, n % 4
    base = T3SLOT[u % 6] * S3
    for rd in range(2):
        off = base + (16 * s_ + 8 * rd) * 384 + ng * 64
        r = vT3A + 4 * (q % 8) + 2 * rd
        k = off // 49152
        a(f"ds_read_b64_tr_b16 {vr(r,2)}, v{T3ADDR[(k, ng & 1)]} offset:{off - 49152*k}")

def t3_loadB(a, n):
    if n >= 72: return
    part, aa, sl, fh = t3_blk(n)
    a(f"s_add_u32 s{sT0}, s{sHSL+sl}, {(6*part + 3*fh + aa)*8192}")
    a.vmem(f"buffer_load_dwordx4 {vr(vT3B+4*(n % BR),4)}, v{vL16}, s[{S_WS}:{S_WS+3}], s{sT0} offen sc1", tag=("B", n))

def t3_addr_setup(a):
    e, o = T3ADDR[(0,0)], T3ADDR[(0,1)]
    a(f"v_lshrrev_b32 v56, 5, v{vLANE}\n v_lshlrev_b32 v56, 2, v56\n v_bfe_u32 v57, v{vLANE}, 2, 2\n v_add_u32 v56, v56, v57")
    a(f"s_mov_b32 s{sT0}, 384\n v_mul_u32_u24 v56, s{sT0}, v56\n v_bfe_u32 v57, v{vLANE}, 4, 1\n v_lshl_add_u32 v56, v57, 5, v56")
    a(f"v_and_b32 v57, 3, v{vLANE}\n v_lshl_add_u32 v56, v57, 3, v56\n v_bfe_u32 v57, v{vLANE}, 3, 1\n v_lshlrev_b32 v57, 6, v57")
    a(f"v_add_u32 v{e}, v56, v57\n v_sub_u32 v{o}, v56, v57")
    for k in (1, 2):
        a(f"v_add_u32 v{T3ADDR[(k,0)]}, {49152*k}, v{e}\n v_add_u32 v{T3ADDR[(k,1)]}, {49152*k}, v{o}")

def t3_compute(a):
    chk = {36 - PD: 1, 48 - PD: 2, 60 - PD: 3}
    iss = {c - 6: st for c, st in chk.items()}
    for n in range(72):
        if n % 8 == 0: lstamp(a, n // 8)
        if n in iss: flag_issue(a, S_WS, f"s{sFHB}", ("F", iss[n]))
        if n in chk: flag_check(a, S_WS, f"s{sFHB}", ("F", chk[n]), 1, fh_mask(chk[n]))
        t3_loadB(a, n + PD)
        a.vwait(lambda t: t == ("B", n))
        for ng in range(6):
            q = 6 * n + ng
            rem = min(6, 431 - q)
            a(f"s_waitcnt lgkmcnt({2*rem})")
            acc = vACC + 16 * ng
            a(f"v_mfma_f32_32x32x16_bf16 {vr(acc,16)}, {vr(vT3A+4*(q%8),4)}, {vr(vT3B+4*(n%BR),4)}, {vr(acc,16)}")
            t3_readA(a, q + 7)
        if n % 4 == 3 and n < 71:
            helper_wait(a, 36 + n // 4)
            a("s_barrier")

def unpack_add(a, dst, src, first):
    for e in range(4):
        if first:
            a(f"v_lshlrev_b32 v{dst+2*e}, 16, v{src+e}\n v_and_b32 v{dst+2*e+1}, 0xffff0000, v{src+e}")
        else:
            a(f"v_lshlrev_b32 v56, 16, v{src+e}\n v_and_b32 v57, 0xffff0000, v{src+e}\n v_add_f32 v{dst+2*e}, v{dst+2*e}, v56\n v_add_f32 v{dst+2*e+1}, v{dst+2*e+1}, v57")

def ffn_role(a):
    a(f"s_mul_i32 s{sM2}, s{sT1}, 43\n s_lshr_b32 s{sM2}, s{sM2}, 8\n s_mul_i32 s{sGI}, s{sM2}, 6\n s_sub_u32 s{sGI}, s{sT1}, s{sGI}")
    a(f"s_and_b32 s{sT0}, s{sT0}, 1\n s_lshl_b32 s{sT0}, s{sT0}, 2\n s_add_u32 s{sM2}, s{sM2}, s{sT0}")
    a(f"s_mul_i32 s{sF}, s{sKQ}, 6\n s_add_u32 s{sF}, s{sF}, s{sGI}")
    a(f"s_cmp_ge_u32 s{sGI}, 3\n s_cselect_b32 s{sTH}, 1, 0\n s_mul_i32 s{sNT}, s{sTH}, 3\n s_sub_u32 s{sNT}, s{sGI}, s{sNT}")
    a(f"s_and_b32 s{sLO}, s{sW4}, 1\n s_lshr_b32 s{sHI}, s{sW4}, 1")
    a(f"s_mul_i32 s{sWSO}, s{sLO}, {16*9216}\n s_mul_i32 s{sHB}, s{sF}, 384\n s_add_u32 s{sWSO}, s{sWSO}, s{sHB}")
    a(f"s_mul_i32 s{sWLDS}, s{sHI}, {UOFF}\n s_mul_i32 s{sHB}, s{sLO}, 3072\n s_add_u32 s{sWLDS}, s{sWLDS}, s{sHB}\n s_add_u32 s{sWLDS}, s{sWLDS}, {WR}")
    a(f"s_lshl_b32 s{sXSO}, s{sM2}, 8\n s_lshl_b32 s{sHB}, s{sW4}, 5\n s_add_u32 s{sXSO}, s{sXSO}, s{sHB}\n s_mul_i32 s{sXSO}, s{sXSO}, 1152")
    a(f"s_lshl_b32 s{sXLDS}, s{sW4}, 12")
    for i in range(3):
        a(f"v_add_u32 v56, {64*i}, v{vLANE}")
        divmod_small(a, 57, 58, 56, 12, sDW)
        a(f"s_mov_b32 s{sDW}, 9216\n v_mul_u32_u24 v57, s{sDW}, v57\n v_lshl_add_u32 v{vDW+i}, v58, 4, v57")
    a(f"v_lshrrev_b32 v56, 3, v{vLANE}\n v_and_b32 v57, 7, v{vLANE}\n v_lshrrev_b32 v58, 1, v56")
    a(f"s_mov_b32 s{sDW}, 1152\n v_mul_u32_u24 v56, s{sDW}, v56\n v_xor_b32 v57, v57, v58")
    a(f"v_lshl_add_u32 v{vDX}, v57, 4, v56\n v_xor_b32 v57, 4, v57\n v_lshl_add_u32 v{vDX+1}, v57, 4, v56")
    a("s_waitcnt lgkmcnt(0)")
    srd(a, S_X, 64, 65, 2048 * 1152)
    a(f"s_cmp_lt_u32 s{sW4}, 2\n s_cselect_b32 s{sDW}, s72, s74\n s_cselect_b32 s{sDX}, s73, s75")
    srd(a, S_W, sDW, sDX, 576 * 9216)
    srd(a, S_WS, 84, 85, WS_SIZE)
    a.vm = []
    a(f"s_cmp_eq_u32 s{sGRP}, 0\n s_cbranch_scc1 L_skipdma")
    dma_W(a, 0); dma_X(a, 0, 0); dma_X(a, 0, 1); dma_W(a, 1); dma_W(a, 2); dma_X(a, 1, 0); dma_X(a, 1, 1); dma_W(a, 3)
    a.label("L_skipdma")
    vmY = list(a.vm)
    srd(a, S_WD, 76, 77, 4608 * 1152)
    srd(a, S_GW, 78, 79, 1152)
    srd(a, S_OUT, 80, 81, 2048 * 1152)
    srd(a, S_DBG, 82, 83, 256)
    a(f"s_mul_i32 s{sHB}, s{sM2}, 288\n s_mul_i32 s{sDW}, s{sF}, 12\n s_add_u32 s{sHB}, s{sHB}, s{sDW}\n s_mul_i32 s{sDW}, s{sLO}, 3\n s_add_u32 s{sHB}, s{sHB}, s{sDW}")
    a(f"s_lshl_b32 s{sHB}, s{sHB}, 3\n s_lshl_b32 s{sDW}, s{sHI}, 2\n s_add_u32 s{sHB}, s{sHB}, s{sDW}\n s_lshl_b32 s{sHB}, s{sHB}, 10")
    if H_OFF: a(f"s_add_u32 s{sHB}, s{sHB}, {H_OFF}")
    a(f"s_mov_b32 s{sCW}, {WSZ}\n s_mov_b32 s{sCX}, {XS}")
    a(f"v_bfe_u32 v56, v{vLANE}, 4, 1\n s_mov_b32 s{sDW}, {UOFF}\n v_mul_u32_u24 v{vA}, s{sDW}, v56")
    a(f"v_lshrrev_b32 v56, 5, v{vLANE}\n v_lshlrev_b32 v56, 3, v56\n v_bfe_u32 v57, v{vLANE}, 2, 2\n v_add_u32 v56, v56, v57")
    a(f"s_mov_b32 s{sDW}, 192\n v_mad_u32_u24 v{vA}, v56, s{sDW}, v{vA}\n v_and_b32 v56, 3, v{vLANE}\n v_lshl_add_u32 v{vA}, v56, 3, v{vA}")
    a(f"s_mul_i32 s{sDW}, s{sLO}, 96\n s_add_u32 s{sDW}, s{sDW}, {WR}\n s_mul_i32 s{sDX}, s{sGRP}, {(18 % NW)*WSZ}\n s_add_u32 s{sDW}, s{sDW}, s{sDX}\n v_add_u32 v{vA}, s{sDW}, v{vA}")
    a(f"s_mul_i32 s{sWI}, s{sGRP}, {18 % NW}\n s_mov_b32 s{sXI}, 0")
    a(f"v_and_b32 v56, 31, v{vLANE}\n v_bfe_u32 v57, v{vLANE}, 1, 3\n v_lshrrev_b32 v58, 5, v{vLANE}\n v_xor_b32 v57, v57, v58")
    a(f"v_lshlrev_b32 v56, 7, v56\n v_lshl_add_u32 v{vB}, v57, 4, v56\n s_lshl_b32 s{sDW}, s{sHI}, 14\n v_add_u32 v{vB}, s{sDW}, v{vB}")
    for s in range(1, 4): a(f"v_xor_b32 v{vB+s}, {s<<5}, v{vB}")
    for i in range(3):
        a(f"v_add_u32 v56, {64*i}, v{vLANE}")
        divmod_small(a, 57, 58, 56, 24, sDW)
        a(f"v_bfe_u32 v56, v57, 1, 1\n v_lshlrev_b32 v56, 2, v56\n v_xor_b32 v58, v58, v56")
        a(f"s_mov_b32 s{sDW}, 1152\n v_mul_u32_u24 v57, s{sDW}, v57\n v_lshl_add_u32 v{vDD+i}, v58, 4, v57")
    a(f"s_mul_i32 s{sWDLDS}, s{sW4}, 6144")
    a(f"s_mul_i32 s{sDW}, s{sKQ}, 1152\n s_mul_i32 s{sDX}, s{sHI}, 192\n s_add_u32 s{sDW}, s{sDW}, s{sDX}\n s_mul_i32 s{sDX}, s{sLO}, 48\n s_add_u32 s{sDW}, s{sDW}, s{sDX}")
    a(f"s_mul_i32 s{sDW}, s{sDW}, 1152\n s_mul_i32 s{sDX}, s{sNT}, 384\n s_add_u32 s{sWDP}, s{sDW}, s{sDX}")
    a(f"s_add_u32 s{sWDP+1}, s{sWDP}, {384*1152}\n s_add_u32 s{sWDP+2}, s{sWDP}, {768*1152}")
    a(f"s_mul_i32 s{sDW}, s{sM2}, 288\n s_mul_i32 s{sDX}, s{sKQ}, 72\n s_add_u32 s{sDW}, s{sDW}, s{sDX}\n s_lshl_b32 s{sDW}, s{sDW}, 3")
    a(f"s_lshl_b32 s{sDX}, s{sTH}, 2\n s_add_u32 s{sDW}, s{sDW}, s{sDX}\n s_add_u32 s{sDW}, s{sDW}, s{sW4}\n s_lshl_b32 s{sHSL}, s{sDW}, 10")
    if H_OFF: a(f"s_add_u32 s{sHSL}, s{sHSL}, {H_OFF}")
    for sl in range(1, 6): a(f"s_add_u32 s{sHSL+sl}, s{sHSL}, {sl*12*8192}")
    a(f"s_lshl_b32 s{sDW}, s{sM2}, 1\n s_add_u32 s{sDW}, s{sDW}, s{sTH}\n s_mul_i32 s{sDW}, s{sDW}, 3\n s_add_u32 s{sDW}, s{sDW}, s{sNT}\n s_lshl_b32 s{sDW}, s{sDW}, 2")
    a(f"s_cmp_eq_u32 s{sGRP}, 0\n s_cselect_b32 s{sDX}, s{sW4}, s{sKQ}\n s_add_u32 s{sOWN}, s{sDW}, s{sDX}")
    a(f"s_lshl_b32 s{sDW}, s{sM2}, 2\n s_add_u32 s{sDW}, s{sDW}, s{sKQ}\n s_lshl_b32 s{sDW}, s{sDW}, 1")
    a(f"s_add_u32 s{sFHB}, s{sDW}, s{sTH}\n s_lshl_b32 s{sFHB}, s{sFHB}, 8\n s_add_u32 s{sFHB}, s{sFHB}, {FH_OFF}")
    a(f"s_add_u32 s{sFHP}, s{sDW}, s{sHI}\n s_lshl_b32 s{sFHP}, s{sFHP}, 8\n s_lshl_b32 s{sDX}, s{sGI}, 1\n s_add_u32 s{sDX}, s{sDX}, s{sLO}\n s_lshl_b32 s{sDX}, s{sDX}, 2\n s_add_u32 s{sFHP}, s{sFHP}, s{sDX}\n s_add_u32 s{sFHP}, s{sFHP}, {FH_OFF}")
    a(f"v_lshlrev_b32 v{vL4}, 2, v{vLANE}")
    a(f"s_cmp_eq_u32 s{sGRP}, 1\n s_cbranch_scc1 L_Y")
    a.vm = []
    stamp(a, 0)
    a(f"s_lshl_b32 s{sPB}, s{sOWN}, 7\n s_lshl_b32 s{sDW}, s{sKQ}, 2\n s_add_u32 s{sPB}, s{sPB}, s{sDW}\n s_add_u32 s{sPB}, s{sPB}, {FP_OFF}")
    a(f"v_mul_u32_u24 v56, 48, v{vLANE}\n v_add_u32 v56, s{sFHP}, v56\n v_mov_b32 v57, s{sPB}\n v_cmp_eq_u32 vcc, 4, v{vLANE}\n s_nop 1\n v_cndmask_b32 v56, v56, v57, vcc\n v_mov_b32 v57, 0")
    a("s_mov_b64 exec, 0x1f")
    a.vmem(f"buffer_store_dword v57, v56, s[{S_WS}:{S_WS+3}], 0 offen sc1")
    a("s_mov_b64 exec, -1")
    zero_regs(a, vACC, 192)
    a.vwait_all()
    a("s_barrier")
    stamp(a, 1)
    pass_preload(a)
    a("s_branch L_passentry")
    a.label("L_Y")
    a.vm = vmY
    stamp(a, 0)
    a(f"v_lshrrev_b32 v56, 5, v{vLANE}\n v_lshlrev_b32 v56, 4, v56\n s_lshl_b32 s{sDW}, s{sW4}, 5\n v_add_u32 v56, s{sDW}, v56")
    for i in range(9):
        a.vmem(f"buffer_load_dwordx4 {vr(16+4*i,4)}, v56, s[{S_GW}:{S_GW+3}], 0 offen offset:{128*i}", tag=("G",))
    a(f"v_and_b32 v57, 31, v{vLANE}\n v_bfe_u32 v58, v{vLANE}, 1, 3\n v_lshrrev_b32 v56, 4, v56\n v_xor_b32 v58, v58, v56\n v_lshlrev_b32 v57, 7, v57\n v_lshl_add_u32 v57, v58, 4, v57")
    a(f"s_lshl_b32 s{sDW}, s{sTH}, 14\n s_lshl_b32 s{sDX}, s{sKQ}, 12\n s_add_u32 s{sDW}, s{sDW}, s{sDX}\n v_add_u32 v57, s{sDW}, v57\n v_add_u32 v0, {2*XS}, v57\n v_mov_b32 v56, 0")
    zero_regs(a, vACC, 192)
    helper_wait(a, -1)
    a("s_barrier")
    stamp(a, 1)
    for t in range(18):
        a.comment(f"Y helper tick {t}")
        helper_dma(a, t)
        if t == 0:
            lab = a.newlabel("L_noat")
            a(f"s_cmp_eq_u32 s{sW4}, 0\n s_cbranch_scc0 {lab}")
            a(f"s_and_b32 s{sT0}, s2, 63\n s_lshl_b32 s{sT0}, s{sT0}, 2\n v_mov_b32 v60, 1\n v_mov_b32 v61, s{sT0}\n s_mov_b64 exec, 1")
            a(f"buffer_atomic_add v60, v61, s[{S_DBG}:{S_DBG+3}], 0 offen sc1")
            a("s_mov_b64 exec, -1")
            a.label(lab)
        if t % 2 == 0:
            sl = t // 2
            if sl == 0: a.vwait(lambda tg: tg == ("G",))
            if sl % 3 == 2: a(f"ds_read_b128 v[52:55], v0")
            else: a(f"ds_read_b128 v[52:55], v57 offset:{(sl % 3)*XS}")
            a("s_waitcnt lgkmcnt(0)")
            for e in range(4): a(f"v_dot2c_f32_bf16 v56, v{52+e}, v{16+4*sl+e}")
            if sl == 8:
                a(f"s_lshl_b32 s{sT0}, s{sW4}, 8\n s_add_u32 s{sT0}, s{sT0}, {GATE_LDS}\n v_add_u32 v57, s{sT0}, v{vL4}\n s_nop 2\n ds_write_b32 v57, v56\n s_waitcnt lgkmcnt(0)")
        helper_wait(a, t)
        if t == 17: pass_preload(a)
        a("s_barrier")
    stamp(a, 2)
    a.label("L_passentry")
    pass_loop(a)
    a.vm = []
    a(f"s_cmp_eq_u32 s{sGRP}, 1\n s_cbranch_scc1 L_Y2")
    stamp(a, 2)
    units = [(aa, j) for aa in range(3) for j in range(4)]
    for t in range(18, 36):
        a.comment(f"X helper tick {t}")
        helper_dma(a, t)
        if t - 18 < 12: epi_unit(a, 0, *units[t - 18])
        if t == 30:
            zero_regs(a, vACC, 96)
            t3_addr_setup(a)
            flag_issue(a, S_DBG, "0", ("C",))
        if t == 32:
            a.vwait(lambda tg: tg is not None and tg[0] == "H")
            flag_store(a, sFHP, 0)
            flag_check(a, S_DBG, "0", ("C",), 4, (1 << 64) - 1)
        if t == 34:
            flag_issue(a, S_WS, f"s{sFHB}", ("F", 0))
        if t == 35:
            flag_check(a, S_WS, f"s{sFHB}", ("F", 0), 1, fh_mask(0))
            for n in range(PD): t3_loadB(a, n)
        helper_wait(a, t)
        if t == 35:
            for q in range(7): t3_readA(a, q)
        a("s_barrier")
    stamp(a, 3)
    t3_compute(a)
    stamp(a, 4)
    a(f"s_lshl_b32 s{sDW}, s{sOWN}, 2\n s_add_u32 s{sDW}, s{sDW}, s{sKQ}\n s_mul_i32 s{sDW}, s{sDW}, 12288\n s_add_u32 s{sDW}, s{sDW}, {P_OFF}")
    a("s_nop 7\n s_nop 3")
    for c in range(12):
        R = vACC + 8 * c
        P = vT3B + 4 * c
        for e in range(4): a(f"v_cvt_pk_bf16_f32 v{P+e}, v{R+2*e}, v{R+2*e+1}")
        a(f"s_add_u32 s{sT1}, s{sDW}, {1024*c}")
        a.vmem(f"buffer_store_dwordx4 {vr(P,4)}, v{vL16}, s[{S_WS}:{S_WS+3}], s{sT1} offen sc1")
    a.vwait_all()
    flag_store(a, sPB, 0)
    stamp(a, 5)
    lflush(a, 9)
    a("s_branch L_end")
    a.label("L_Y2")
    a.vm = []
    stamp(a, 3)
    SA, SB, LD = 64, 96, 128
    for t in range(36, 53):
        a.comment(f"Y helper tick {t}")
        helper_dma(a, t)
        k = t - 36
        if k < 6:
            epi_unit(a, 1, *units[2 * k]); epi_unit(a, 1, *units[2 * k + 1])
        if k in (4, 6, 8):
            aa = (k - 4) // 2
            a.vwait(lambda tg: tg == ("H", 1, aa))
            flag_store(a, sFHP, 48 * (aa + 1))
        if k == 10: flag_issue(a, S_DBG, "0", ("C",))
        if k == 12: flag_check(a, S_DBG, "0", ("C",), 4, (1 << 64) - 1)
        helper_wait(a, t)
        a("s_barrier")
    stamp(a, 4)
    a(f"v_and_b32 v56, 31, v{vLANE}\n v_lshlrev_b32 v56, 2, v56\n v_add_u32 v56, {GATE_LDS}, v56")
    for i in range(4): a(f"ds_read2_b32 {vr(16+2*i,2)}, v56 offset0:{64*i} offset1:{64*i+32}")
    a("s_waitcnt lgkmcnt(0)")
    a("v_add_f32 v16, v16, v17\n v_add_f32 v18, v18, v19\n v_add_f32 v20, v20, v21\n v_add_f32 v22, v22, v23\n v_add_f32 v16, v16, v18\n v_add_f32 v20, v20, v22\n v_add_f32 v16, v16, v20")
    a(f"v_mul_f32 v17, s{sNL2E}, v16\n v_exp_f32 v17, v17\n v_sub_f32 v18, 0, v16\n v_mul_f32 v18, s{sNL2E}, v18\n v_exp_f32 v18, v18\n v_add_f32 v17, 1.0, v17\n v_rcp_f32 v16, v17\n v_add_f32 v18, 1.0, v18\n v_rcp_f32 v17, v18")
    a(f"s_mul_i32 s{sPB}, s{sOWN}, 49152\n s_mul_i32 s{sDW}, s{sW4}, 3072\n s_add_u32 s{sPB}, s{sPB}, s{sDW}")
    if Cfg.att:
        a(f"s_lshl_b32 s{sDW}, s{sM2}, 1\n s_add_u32 s{sDW}, s{sDW}, s{sTH}\n s_lshl_b32 s{sDW}, s{sDW}, 2\n s_add_u32 s{sDW}, s{sDW}, s{sKQ}\n s_lshl_b32 s{sDW}, s{sDW}, 7\n s_add_u32 s{sDW}, s{sDW}, {FA_OFF}")
        flag_issue(a, S_WS, f"s{sDW}", ("FA",))
        flag_check(a, S_WS, f"s{sDW}", ("FA",), 1, 0xff)
        for src in range(4):
            for c in range(3):
                a(f"s_add_u32 s{sT1}, s{sPB}, {AP_OFF + src*12288 + c*1024}")
                a.vmem(f"buffer_load_dwordx4 {vr(LD+4*(3*src+c),4)}, v{vL16}, s[{S_WS}:{S_WS+3}], s{sT1} offen sc1", tag=("AP", src))
        for src in range(4):
            a.vwait(lambda tg: tg == ("AP", src))
            for c in range(3): unpack_add(a, SA + 8 * c, LD + 4 * (3 * src + c), src == 0)
        for e in range(24): a(f"v_mul_f32 v{SA+e}, v16, v{SA+e}")
    else:
        zero_regs(a, SA, 24)
    stamp(a, 5)
    a(f"s_lshl_b32 s{sDW}, s{sOWN}, 7\n s_add_u32 s{sDW}, s{sDW}, {FP_OFF}")
    flag_issue(a, S_WS, f"s{sDW}", ("FP",))
    flag_check(a, S_WS, f"s{sDW}", ("FP",), 1, 0xf)
    stamp(a, 6)
    for src in range(4):
        for c in range(3):
            a(f"s_add_u32 s{sT1}, s{sPB}, {P_OFF + src*12288 + c*1024}")
            a.vmem(f"buffer_load_dwordx4 {vr(LD+4*(3*src+c),4)}, v{vL16}, s[{S_WS}:{S_WS+3}], s{sT1} offen sc1", tag=("P", src))
    a(f"v_and_b32 v18, 31, v{vLANE}\n s_mov_b32 s{sDW}, 1152\n v_mul_u32_u24 v18, s{sDW}, v18\n v_lshrrev_b32 v19, 5, v{vLANE}\n v_lshl_add_u32 v18, v19, 3, v18")
    a(f"s_lshl_b32 s{sDW}, s{sM2}, 8\n s_lshl_b32 s{sDX}, s{sTH}, 7\n s_add_u32 s{sDW}, s{sDW}, s{sDX}\n s_lshl_b32 s{sDX}, s{sKQ}, 5\n s_add_u32 s{sDW}, s{sDW}, s{sDX}\n s_mul_i32 s{sDW}, s{sDW}, 1152")
    a(f"s_mul_i32 s{sDX}, s{sNT}, 384\n s_add_u32 s{sDW}, s{sDW}, s{sDX}\n s_mul_i32 s{sDX}, s{sW4}, 96\n s_add_u32 s{sDW}, s{sDW}, s{sDX}")
    for src in range(4):
        a.vwait(lambda tg: tg == ("P", src))
        for c in range(3): unpack_add(a, SB + 8 * c, LD + 4 * (3 * src + c), src == 0)
    for e in range(24): a(f"v_fma_f32 v{SA+e}, v17, v{SB+e}, v{SA+e}")
    for c in range(3):
        for e in range(4): a(f"v_cvt_pk_bf16_f32 v{LD+4*c+e}, v{SA+8*c+2*e}, v{SA+8*c+2*e+1}")
        a.vmem(f"buffer_store_dwordx2 {vr(LD+4*c,2)}, v18, s[{S_OUT}:{S_OUT+3}], s{sDW} offen offset:{32*c}")
        a.vmem(f"buffer_store_dwordx2 {vr(LD+4*c+2,2)}, v18, s[{S_OUT}:{S_OUT+3}], s{sDW} offen offset:{32*c+16}")
    stamp(a, 7)
    a("s_branch L_end")

from att import att_role

def gen():
    a = Asm()
    hdr = open(f"cdna_kernels/{NAME}.s.ref").read().split("; Override launch geometry")[0]
    out = hdr + f"; @launch grid=(256,1,1) block=(512,1,1) lds={LDS_TOTAL}\n"
    out += f'.amdgcn_target "amdgcn-amd-amdhsa--gfx950"\n.text\n.globl {NAME}_kernel\n.p2align 8\n.type {NAME}_kernel,@function\n{NAME}_kernel:\n'
    a("s_cmp_ge_u32 s2, 256\n s_cbranch_scc1 L_end")
    a("s_load_dwordx16 s[64:79], s[0:1], 0\n s_load_dwordx4 s[80:83], s[0:1], 64\n s_load_dwordx2 s[84:85], s[0:1], 80")
    a(f"v_lshrrev_b32 v2, 6, v0\n v_and_b32 v{vLANE}, 63, v0\n s_nop 0\n v_readfirstlane_b32 s{sWAVE}, v2")
    a(f"s_and_b32 s{sT0}, s2, 7\n s_lshr_b32 s{sT1}, s2, 3")
    a(f"s_and_b32 s{sW4}, s{sWAVE}, 3\n s_lshr_b32 s{sGRP}, s{sWAVE}, 2\n s_lshr_b32 s{sKQ}, s{sT0}, 1")
    a(f"s_mov_b32 s{sNL2E}, 0xbfb8aa3b\n v_lshlrev_b32 v{vL16}, 4, v{vLANE}")
    a(f"s_lshl_b32 s{sTS+2}, s2, 3\n s_add_u32 s{sTS+2}, s{sTS+2}, s{sWAVE}\n s_lshl_b32 s{sTS+2}, s{sTS+2}, 8\n s_add_u32 s{sTS+2}, s{sTS+2}, {TS_OFF}")
    a(f"s_cmp_ge_u32 s{sT1}, 24\n s_cbranch_scc1 L_att")
    ffn_role(a)
    a.label("L_att")
    att_role(a, sys.modules[__name__])
    a.label("L_end")
    a("s_endpgm")
    out += a.text()
    out += f'''.section .rodata,"a"
.p2align 6
.amdhsa_kernel {NAME}_kernel
  .amdhsa_next_free_vgpr 256
  .amdhsa_next_free_sgpr 102
  .amdhsa_accum_offset 256
  .amdhsa_group_segment_fixed_size 0
  .amdhsa_kernarg_size 88
  .amdhsa_user_sgpr_count 2
  .amdhsa_user_sgpr_kernarg_segment_ptr 1
  .amdhsa_system_sgpr_workgroup_id_x 1
.end_amdhsa_kernel
'''
    return out

if __name__ == "__main__":
    if "--ts" in sys.argv: Cfg.ts = True
    if "--noatt" in sys.argv: Cfg.att = False
    dst = sys.argv[1] if len(sys.argv) > 1 and not sys.argv[1].startswith("--") else "k.s"
    open(dst, "w").write(gen())
```

```python
import sys
sys.path.insert(0, 'dev')
from asmlib import *

NAME = "gated_mix__sliding_local_dilated__glu_gated_glu__prompt"
H_OFF = 0
P_OFF = 0x1400000
AP_OFF = 0x2000000
FL_OFF = 0x3000000
TS_OFF = 0x3100000
WS_SIZE = 0x4000000
FH_OFF = FL_OFF
FP_OFF = FL_OFF + 0x4000
FA_OFF = FL_OFF + 0xA000
XS = 32768
WR = 3 * XS
WSZ = 12320
UOFF = 6176
NW = 5
GATE_LDS = WR + NW * WSZ
LDS_TOTAL = 163840
S3 = 24576
T3SLOT = [0, 1, 5, 2, 3, 4]
PD = 10
BR = 16

S_X, S_W, S_WD, S_WS, S_OUT, S_DBG, S_GW = 8, 12, 16, 20, 24, 28, 32
sWAVE, sW4, sKQ, sM2, sGI, sF, sTH, sNT = 36, 37, 38, 39, 40, 41, 42, 43
sWSO, sWLDS, sXSO, sXLDS, sHB, sNL2E = 44, 45, 46, 47, 48, 49
sT0, sT1 = 50, 51
sLOOP, sWI, sXI, sDW, sDX = 52, 53, 54, 55, 56
sLO, sWDLDS = 57, 58
sGRP = 59
sTS = 60
sHI = 63
sCW, sCX = 86, 87
sWDP = 88
sHSL = 91
sPB = 97
sFHB = 98
sFHP = 99
sSPIN = 100
sOWN = 101
vLANE = 1
vA = 2
vB = 3
vL16 = 7
vDW = 8
vDX = 11
vDD = 13
vAF = 16
vBF = 40
vT = 56
vFLG = 58
vL4 = 59
vACC = 64
vT3A = 16
vT3B = 160
T3ADDR = {(0,0): 2, (0,1): 3, (1,0): 4, (1,1): 5, (2,0): 6, (2,1): 0}

class Cfg:
    ts = False
    att = True
    wsoff = 0

def srd(a, d, lo, hi, size):
    if d == S_WS and Cfg.wsoff:
        a(f"s_add_u32 s{lo}, s{lo}, {Cfg.wsoff:#x}\n s_addc_u32 s{hi}, s{hi}, 0")
    a(f"s_mov_b32 s{d}, s{lo}\n s_and_b32 s{d+1}, s{hi}, 0xffff\n s_mov_b32 s{d+2}, {size:#x}\n s_mov_b32 s{d+3}, 0x20000")

def divmod_small(a, vq, vrm, vsrc, d, tmp_s, rng=1024):
    m = (65536 + d - 1) // d
    for x in range(0, rng):
        assert (x * m) >> 16 == x // d, (d, x)
    a(f"s_mov_b32 s{tmp_s}, {m}\n v_mul_u32_u24 v{vq}, s{tmp_s}, v{vsrc}\n v_lshrrev_b32 v{vq}, 16, v{vq}")
    if vrm is not None:
        if d <= 64: a(f"v_mul_u32_u24 v{vrm}, {d}, v{vq}")
        else: a(f"s_mov_b32 s{tmp_s}, {d}\n v_mul_u32_u24 v{vrm}, s{tmp_s}, v{vq}")
        a(f"v_sub_u32 v{vrm}, v{vsrc}, v{vrm}")

def stamp(a, idx):
    if not Cfg.ts: return
    a(f"s_memtime s[{sTS}:{sTS+1}]\n s_waitcnt lgkmcnt(0)")
    a(f"v_mov_b32 v63, s{sTS}\n v_mov_b32 v62, s{sTS+2}")
    a.vmem(f"buffer_store_dword v63, v62, s[{S_WS}:{S_WS+3}], 0 offen offset:{idx*4}", tag=("ts",))

def rstamp(a, idx):
    if not Cfg.ts: return
    a(f"s_memrealtime s[{sTS}:{sTS+1}]\n s_waitcnt lgkmcnt(0)")
    a(f"v_mov_b32 v63, s{sTS}\n v_mov_b32 v62, s{sTS+2}")
    a.vmem(f"buffer_store_dword v63, v62, s[{S_WS}:{S_WS+3}], 0 offen offset:{idx*4}", tag=("ts",))

def lstamp(a, i):
    if Cfg.ts: a(f"s_memtime s[{64+2*i}:{65+2*i}]")
def lflush(a, n, base=8):
    if not Cfg.ts: return
    a(f"s_waitcnt lgkmcnt(0)\n v_mov_b32 v62, s{sTS+2}")
    for i in range(n):
        a(f"v_mov_b32 v63, s{64+2*i}")
        a.vmem(f"buffer_store_dword v63, v62, s[{S_WS}:{S_WS+3}], 0 offen offset:{(base+i)*4}", tag=("ts",))
        a("s_nop 1")

def zero_regs(a, lo, n):
    for r in range(lo, lo + n): a(f"v_mov_b32 v{r}, 0")

def flag_store(a, sbase, imm, tag=None):
    a(f"v_mov_b32 v60, 1\n v_mov_b32 v61, 0\n s_add_u32 s{sT1}, s{sbase}, {imm}")
    a("s_mov_b64 exec, 1")
    a.vmem(f"buffer_store_dword v60, v61, s[{S_WS}:{S_WS+3}], s{sT1} offen sc1", tag=tag)
    a("s_mov_b64 exec, -1")

def flag_issue(a, srd_, soff, tag):
    a.vmem(f"buffer_load_dword v{vFLG}, v{vL4}, s[{srd_}:{srd_+3}], {soff} offen sc1", tag=tag)

def flag_check(a, srd_, soff, tag, val, mask):
    ok, spin = a.newlabel("L_ok"), a.newlabel("L_spin")
    a.vwait(lambda t: t == tag)
    a(f"s_mov_b32 s{sSPIN}, 0x20000")
    a.label(spin)
    a(f"v_cmp_gt_u32 vcc, {val}, v{vFLG}")
    a(f"s_and_b32 s{sT0}, vcc_lo, {mask & 0xffffffff:#x}\n s_and_b32 s{sT1}, vcc_hi, {mask >> 32:#x}\n s_or_b32 s{sT0}, s{sT0}, s{sT1}\n s_cbranch_scc0 {ok}")
    a(f"s_sub_u32 s{sSPIN}, s{sSPIN}, 1\n s_cbranch_scc1 {ok}\n s_sleep 1")
    a(f"buffer_load_dword v{vFLG}, v{vL4}, s[{srd_}:{srd_+3}], {soff} offen sc1\n s_waitcnt vmcnt(0)\n s_branch {spin}")
    a.label(ok)

def fh_mask(st): return ((1 << 12) - 1) << (12 * st)

def dma_W(a, st):
    ps, tt = st // 18, st % 18
    slot = st % NW
    for i in range(3):
        a(f"s_add_u32 m0, s{sWLDS}, {slot*WSZ + 1024*i}")
        a(f"s_add_u32 s{sT0}, s{sWSO}, {32*tt*9216 + 192*ps}")
        a.vmem(f"buffer_load_dwordx4 v{vDW+i}, s[{S_W}:{S_W+3}], s{sT0} offen lds", tag=("W", st))

def dma_X(a, slab, hh):
    ks = slab % 9
    slot = slab % 3
    for i in range(4):
        a(f"s_add_u32 m0, s{sXLDS}, {slot*XS + hh*16384 + 1024*i}")
        a(f"s_add_u32 s{sT0}, s{sXSO}, {(128*hh + 8*i)*1152 + ks*128}")
        a.vmem(f"buffer_load_dwordx4 v{vDX+(i&1)}, s[{S_X}:{S_X+3}], s{sT0} offen lds", tag=("X", slab))

def t3_blk(n):
    u, s = n // 4, n % 4
    part, aa, p = u // 9, (u % 9) // 3, u % 3
    return part, aa, 2 * p + (s >> 1), s & 1

def dma_D(a, u):
    part, aa, p = u // 9, (u % 9) // 3, u % 3
    slot = T3SLOT[u % 6]
    for i in range(6):
        a(f"s_add_u32 m0, s{sWDLDS}, {slot*S3 + 1024*i}")
        a(f"s_add_u32 s{sT0}, s{sWDP+p}, {(96*part + 16*aa + 8*(i//3))*1152}")
        a.vmem(f"buffer_load_dwordx4 v{vDD+(i%3)}, s[{S_WD}:{S_WD+3}], s{sT0} offen lds", tag=("D", u))
D_ISSUE = {0: 32, 1: 34, 2: 34, 3: 36, 4: 36, 5: 37}
for _u in range(6, 18): D_ISSUE[_u] = 36 + _u - 5

def need_of(tag):
    if tag is None: return 10**9
    if tag[0] == "W": return max(tag[1] - 1, 0)
    if tag[0] == "X": return max(2 * tag[1] - 1, 0)
    if tag[0] == "D": return 36 + tag[1] - 1
    return 10**9

def helper_dma(a, t):
    if t + 4 < 36: dma_W(a, t + 4)
    slab = t // 2 + 2
    if slab < 18: dma_X(a, slab, t & 1)
    for u in range(18):
        if D_ISSUE[u] == t: dma_D(a, u)

def helper_wait(a, t):
    a.vwait(lambda tg: need_of(tg) <= t + 1)

def read_A(a, buf, aa, rd, s):
    r = vAF + 12 * buf + 4 * aa + 2 * rd
    a(f"ds_read_b64_tr_b16 {vr(r,2)}, v{vA} offset:{(16*s + 4*rd)*192 + aa*32}")
def read_B(a, j, s4):
    a(f"ds_read_b128 {vr(vBF+4*j,4)}, v{vB+s4} offset:{4096*j}")

def pass_preload(a):
    order = [("A",0,0),("A",0,1),("B",0),("A",1,0),("A",1,1),("B",1),("A",2,0),("A",2,1),("B",2),("B",3)]
    for o in order:
        if o[0] == "A": read_A(a, 0, o[1], o[2], 0)
        else: read_B(a, o[1], 0)

def adv_W(a):
    a(f"s_add_u32 s{sWI}, s{sWI}, 1\n s_cmp_eq_u32 s{sWI}, {NW}\n s_cselect_b32 s{sDW}, {(-(NW-1)*WSZ) & 0xffffffff:#x}, s{sCW}\n s_cselect_b32 s{sWI}, 0, s{sWI}")
def adv_X(a):
    a(f"s_add_u32 s{sXI}, s{sXI}, 1\n s_cmp_eq_u32 s{sXI}, 3\n s_cselect_b32 s{sDX}, {(-2*XS) & 0xffffffff:#x}, s{sCX}\n s_cselect_b32 s{sXI}, 0, s{sXI}")

def pass_loop(a):
    a(f"s_mov_b32 s{sLOOP}, 9")
    a.l.append(".p2align 6")
    a.label("L_pass")
    waits = {0: 7, 1: 6, 2: 4, 6: 7, 9: 9}
    gaps = {0: ("A",0,0), 1: ("A",0,1), 2: ("B",0), 3: ("A",1,0), 4: ("A",1,1), 5: ("B",1), 6: ("A",2,0), 7: ("A",2,1), 8: ("B",2), 11: ("B",3)}
    for s in range(4):
        buf = s & 1
        ns = (s + 1) & 3
        nsub = ns & 1
        for m in range(12):
            j, aa = m // 3, m % 3
            if m in waits: a(f"s_waitcnt lgkmcnt({waits[m]})")
            acc = vACC + 16 * (aa * 4 + j)
            a(f"v_mfma_f32_32x32x16_bf16 {vr(acc,16)}, {vr(vAF+12*buf+4*aa,4)}, {vr(vBF+4*j,4)}, {vr(acc,16)}")
            if m in gaps:
                g = gaps[m]
                if g[0] == "A": read_A(a, buf ^ 1, g[1], g[2], nsub)
                else: read_B(a, g[1], ns)
            if m == 9 and s in (0, 2):
                adv_W(a)
                a(f"v_add_u32 v{vA}, s{sDW}, v{vA}")
            if m == 9 and s == 1:
                adv_X(a)
                a(f"v_add_u32 v{vB+0}, s{sDX}, v{vB+0}\n v_add_u32 v{vB+1}, s{sDX}, v{vB+1}")
            if m == 9 and s == 3:
                a(f"v_add_u32 v{vB+2}, s{sDX}, v{vB+2}\n v_add_u32 v{vB+3}, s{sDX}, v{vB+3}")
        if s == 1:
            a("s_waitcnt vmcnt(0)\n s_barrier")
        if s == 3:
            a(f"s_sub_u32 s{sLOOP}, s{sLOOP}, 1\n s_cmp_lg_u32 s{sLOOP}, 0\n s_waitcnt vmcnt(0)\n s_barrier\n s_cbranch_scc1 L_pass")
    a("s_waitcnt lgkmcnt(0)")

def epi_unit(a, ps, aa, j):
    R = vACC + 16 * (aa * 4 + j)
    T = vAF
    P = vBF + 4 * ((aa * 4 + j) & 3)
    for e in range(8): a(f"v_mul_f32 v{T+e}, s{sNL2E}, v{R+e}")
    for e in range(8): a(f"v_exp_f32 v{T+e}, v{T+e}")
    for e in range(8): a(f"v_add_f32 v{T+e}, 1.0, v{T+e}")
    for e in range(8): a(f"v_rcp_f32 v{T+e}, v{T+e}")
    for e in range(8): a(f"v_mul_f32 v{T+e}, v{R+8+e}, v{T+e}")
    for e in range(4): a(f"v_cvt_pk_bf16_f32 v{P+e}, v{T+2*e}, v{T+2*e+1}")
    a(f"s_add_u32 s{sT1}, s{sHB}, {ps*6*8192 + aa*8192 + j*1024}")
    a.vmem(f"buffer_store_dwordx4 {vr(P,4)}, v{vL16}, s[{S_WS}:{S_WS+3}], s{sT1} offen sc1", tag=("H", ps, aa))

def t3_readA(a, q):
    n, ng = q // 6, q % 6
    if n >= 72: return
    u, s_ = n // 4, n % 4
    base = T3SLOT[u % 6] * S3
    for rd in range(2):
        off = base + (16 * s_ + 8 * rd) * 384 + ng * 64
        r = vT3A + 4 * (q % 8) + 2 * rd
        k = off // 49152
        a(f"ds_read_b64_tr_b16 {vr(r,2)}, v{T3ADDR[(k, ng & 1)]} offset:{off - 49152*k}")

def t3_loadB(a, n):
    if n >= 72: return
    part, aa, sl, fh = t3_blk(n)
    a(f"s_add_u32 s{sT0}, s{sHSL+sl}, {(6*part + 3*fh + aa)*8192}")
    a.vmem(f"buffer_load_dwordx4 {vr(vT3B+4*(n % BR),4)}, v{vL16}, s[{S_WS}:{S_WS+3}], s{sT0} offen sc1", tag=("B", n))

def t3_addr_setup(a):
    e, o = T3ADDR[(0,0)], T3ADDR[(0,1)]
    a(f"v_lshrrev_b32 v56, 5, v{vLANE}\n v_lshlrev_b32 v56, 2, v56\n v_bfe_u32 v57, v{vLANE}, 2, 2\n v_add_u32 v56, v56, v57")
    a(f"s_mov_b32 s{sT0}, 384\n v_mul_u32_u24 v56, s{sT0}, v56\n v_bfe_u32 v57, v{vLANE}, 4, 1\n v_lshl_add_u32 v56, v57, 5, v56")
    a(f"v_and_b32 v57, 3, v{vLANE}\n v_lshl_add_u32 v56, v57, 3, v56\n v_bfe_u32 v57, v{vLANE}, 3, 1\n v_lshlrev_b32 v57, 6, v57")
    a(f"v_add_u32 v{e}, v56, v57\n v_sub_u32 v{o}, v56, v57")
    for k in (1, 2):
        a(f"v_add_u32 v{T3ADDR[(k,0)]}, {49152*k}, v{e}\n v_add_u32 v{T3ADDR[(k,1)]}, {49152*k}, v{o}")

def t3_compute(a):
    chk = {36 - PD: 1, 48 - PD: 2, 60 - PD: 3}
    iss = {c - 6: st for c, st in chk.items()}
    for n in range(72):
        if n % 8 == 0: lstamp(a, n // 8)
        if n in iss: flag_issue(a, S_WS, f"s{sFHB}", ("F", iss[n]))
        if n in chk: flag_check(a, S_WS, f"s{sFHB}", ("F", chk[n]), 1, fh_mask(chk[n]))
        t3_loadB(a, n + PD)
        a.vwait(lambda t: t == ("B", n))
        for ng in range(6):
            q = 6 * n + ng
            rem = min(6, 431 - q)
            a(f"s_waitcnt lgkmcnt({2*rem})")
            acc = vACC + 16 * ng
            a(f"v_mfma_f32_32x32x16_bf16 {vr(acc,16)}, {vr(vT3A+4*(q%8),4)}, {vr(vT3B+4*(n%BR),4)}, {vr(acc,16)}")
            t3_readA(a, q + 7)
        if n % 4 == 3 and n < 71:
            helper_wait(a, 36 + n // 4)
            a("s_barrier")

def unpack_add(a, dst, src, first):
    for e in range(4):
        if first:
            a(f"v_lshlrev_b32 v{dst+2*e}, 16, v{src+e}\n v_and_b32 v{dst+2*e+1}, 0xffff0000, v{src+e}")
        else:
            a(f"v_lshlrev_b32 v56, 16, v{src+e}\n v_and_b32 v57, 0xffff0000, v{src+e}\n v_add_f32 v{dst+2*e}, v{dst+2*e}, v56\n v_add_f32 v{dst+2*e+1}, v{dst+2*e+1}, v57")

def ffn_role(a):
    a(f"s_mul_i32 s{sM2}, s{sT1}, 43\n s_lshr_b32 s{sM2}, s{sM2}, 8\n s_mul_i32 s{sGI}, s{sM2}, 6\n s_sub_u32 s{sGI}, s{sT1}, s{sGI}")
    a(f"s_and_b32 s{sT0}, s{sT0}, 1\n s_lshl_b32 s{sT0}, s{sT0}, 2\n s_add_u32 s{sM2}, s{sM2}, s{sT0}")
    a(f"s_mul_i32 s{sF}, s{sKQ}, 6\n s_add_u32 s{sF}, s{sF}, s{sGI}")
    a(f"s_cmp_ge_u32 s{sGI}, 3\n s_cselect_b32 s{sTH}, 1, 0\n s_mul_i32 s{sNT}, s{sTH}, 3\n s_sub_u32 s{sNT}, s{sGI}, s{sNT}")
    a(f"s_and_b32 s{sLO}, s{sW4}, 1\n s_lshr_b32 s{sHI}, s{sW4}, 1")
    a(f"s_mul_i32 s{sWSO}, s{sLO}, {16*9216}\n s_mul_i32 s{sHB}, s{sF}, 384\n s_add_u32 s{sWSO}, s{sWSO}, s{sHB}")
    a(f"s_mul_i32 s{sWLDS}, s{sHI}, {UOFF}\n s_mul_i32 s{sHB}, s{sLO}, 3072\n s_add_u32 s{sWLDS}, s{sWLDS}, s{sHB}\n s_add_u32 s{sWLDS}, s{sWLDS}, {WR}")
    a(f"s_lshl_b32 s{sXSO}, s{sM2}, 8\n s_lshl_b32 s{sHB}, s{sW4}, 5\n s_add_u32 s{sXSO}, s{sXSO}, s{sHB}\n s_mul_i32 s{sXSO}, s{sXSO}, 1152")
    a(f"s_lshl_b32 s{sXLDS}, s{sW4}, 12")
    for i in range(3):
        a(f"v_add_u32 v56, {64*i}, v{vLANE}")
        divmod_small(a, 57, 58, 56, 12, sDW)
        a(f"s_mov_b32 s{sDW}, 9216\n v_mul_u32_u24 v57, s{sDW}, v57\n v_lshl_add_u32 v{vDW+i}, v58, 4, v57")
    a(f"v_lshrrev_b32 v56, 3, v{vLANE}\n v_and_b32 v57, 7, v{vLANE}\n v_lshrrev_b32 v58, 1, v56")
    a(f"s_mov_b32 s{sDW}, 1152\n v_mul_u32_u24 v56, s{sDW}, v56\n v_xor_b32 v57, v57, v58")
    a(f"v_lshl_add_u32 v{vDX}, v57, 4, v56\n v_xor_b32 v57, 4, v57\n v_lshl_add_u32 v{vDX+1}, v57, 4, v56")
    a("s_waitcnt lgkmcnt(0)")
    srd(a, S_X, 64, 65, 2048 * 1152)
    a(f"s_cmp_lt_u32 s{sW4}, 2\n s_cselect_b32 s{sDW}, s72, s74\n s_cselect_b32 s{sDX}, s73, s75")
    srd(a, S_W, sDW, sDX, 576 * 9216)
    srd(a, S_WS, 84, 85, WS_SIZE)
    a.vm = []
    a(f"s_cmp_eq_u32 s{sGRP}, 0\n s_cbranch_scc1 L_skipdma")
    dma_W(a, 0); dma_X(a, 0, 0); dma_X(a, 0, 1); dma_W(a, 1); dma_W(a, 2); dma_X(a, 1, 0); dma_X(a, 1, 1); dma_W(a, 3)
    a.label("L_skipdma")
    vmY = list(a.vm)
    srd(a, S_WD, 76, 77, 4608 * 1152)
    srd(a, S_GW, 78, 79, 1152)
    srd(a, S_OUT, 80, 81, 2048 * 1152)
    srd(a, S_DBG, 82, 83, 256)
    a(f"s_mul_i32 s{sHB}, s{sM2}, 288\n s_mul_i32 s{sDW}, s{sF}, 12\n s_add_u32 s{sHB}, s{sHB}, s{sDW}\n s_mul_i32 s{sDW}, s{sLO}, 3\n s_add_u32 s{sHB}, s{sHB}, s{sDW}")
    a(f"s_lshl_b32 s{sHB}, s{sHB}, 3\n s_lshl_b32 s{sDW}, s{sHI}, 2\n s_add_u32 s{sHB}, s{sHB}, s{sDW}\n s_lshl_b32 s{sHB}, s{sHB}, 10")
    if H_OFF: a(f"s_add_u32 s{sHB}, s{sHB}, {H_OFF}")
    a(f"s_mov_b32 s{sCW}, {WSZ}\n s_mov_b32 s{sCX}, {XS}")
    a(f"v_bfe_u32 v56, v{vLANE}, 4, 1\n s_mov_b32 s{sDW}, {UOFF}\n v_mul_u32_u24 v{vA}, s{sDW}, v56")
    a(f"v_lshrrev_b32 v56, 5, v{vLANE}\n v_lshlrev_b32 v56, 3, v56\n v_bfe_u32 v57, v{vLANE}, 2, 2\n v_add_u32 v56, v56, v57")
    a(f"s_mov_b32 s{sDW}, 192\n v_mad_u32_u24 v{vA}, v56, s{sDW}, v{vA}\n v_and_b32 v56, 3, v{vLANE}\n v_lshl_add_u32 v{vA}, v56, 3, v{vA}")
    a(f"s_mul_i32 s{sDW}, s{sLO}, 96\n s_add_u32 s{sDW}, s{sDW}, {WR}\n s_mul_i32 s{sDX}, s{sGRP}, {(18 % NW)*WSZ}\n s_add_u32 s{sDW}, s{sDW}, s{sDX}\n v_add_u32 v{vA}, s{sDW}, v{vA}")
    a(f"s_mul_i32 s{sWI}, s{sGRP}, {18 % NW}\n s_mov_b32 s{sXI}, 0")
    a(f"v_and_b32 v56, 31, v{vLANE}\n v_bfe_u32 v57, v{vLANE}, 1, 3\n v_lshrrev_b32 v58, 5, v{vLANE}\n v_xor_b32 v57, v57, v58")
    a(f"v_lshlrev_b32 v56, 7, v56\n v_lshl_add_u32 v{vB}, v57, 4, v56\n s_lshl_b32 s{sDW}, s{sHI}, 14\n v_add_u32 v{vB}, s{sDW}, v{vB}")
    for s in range(1, 4): a(f"v_xor_b32 v{vB+s}, {s<<5}, v{vB}")
    for i in range(3):
        a(f"v_add_u32 v56, {64*i}, v{vLANE}")
        divmod_small(a, 57, 58, 56, 24, sDW)
        a(f"v_bfe_u32 v56, v57, 1, 1\n v_lshlrev_b32 v56, 2, v56\n v_xor_b32 v58, v58, v56")
        a(f"s_mov_b32 s{sDW}, 1152\n v_mul_u32_u24 v57, s{sDW}, v57\n v_lshl_add_u32 v{vDD+i}, v58, 4, v57")
    a(f"s_mul_i32 s{sWDLDS}, s{sW4}, 6144")
    a(f"s_mul_i32 s{sDW}, s{sKQ}, 1152\n s_mul_i32 s{sDX}, s{sHI}, 192\n s_add_u32 s{sDW}, s{sDW}, s{sDX}\n s_mul_i32 s{sDX}, s{sLO}, 48\n s_add_u32 s{sDW}, s{sDW}, s{sDX}")
    a(f"s_mul_i32 s{sDW}, s{sDW}, 1152\n s_mul_i32 s{sDX}, s{sNT}, 384\n s_add_u32 s{sWDP}, s{sDW}, s{sDX}")
    a(f"s_add_u32 s{sWDP+1}, s{sWDP}, {384*1152}\n s_add_u32 s{sWDP+2}, s{sWDP}, {768*1152}")
    a(f"s_mul_i32 s{sDW}, s{sM2}, 288\n s_mul_i32 s{sDX}, s{sKQ}, 72\n s_add_u32 s{sDW}, s{sDW}, s{sDX}\n s_lshl_b32 s{sDW}, s{sDW}, 3")
    a(f"s_lshl_b32 s{sDX}, s{sTH}, 2\n s_add_u32 s{sDW}, s{sDW}, s{sDX}\n s_add_u32 s{sDW}, s{sDW}, s{sW4}\n s_lshl_b32 s{sHSL}, s{sDW}, 10")
    if H_OFF: a(f"s_add_u32 s{sHSL}, s{sHSL}, {H_OFF}")
    for sl in range(1, 6): a(f"s_add_u32 s{sHSL+sl}, s{sHSL}, {sl*12*8192}")
    a(f"s_lshl_b32 s{sDW}, s{sM2}, 1\n s_add_u32 s{sDW}, s{sDW}, s{sTH}\n s_mul_i32 s{sDW}, s{sDW}, 3\n s_add_u32 s{sDW}, s{sDW}, s{sNT}\n s_lshl_b32 s{sDW}, s{sDW}, 2")
    a(f"s_cmp_eq_u32 s{sGRP}, 0\n s_cselect_b32 s{sDX}, s{sW4}, s{sKQ}\n s_add_u32 s{sOWN}, s{sDW}, s{sDX}")
    a(f"s_lshl_b32 s{sDW}, s{sM2}, 2\n s_add_u32 s{sDW}, s{sDW}, s{sKQ}\n s_lshl_b32 s{sDW}, s{sDW}, 1")
    a(f"s_add_u32 s{sFHB}, s{sDW}, s{sTH}\n s_lshl_b32 s{sFHB}, s{sFHB}, 8\n s_add_u32 s{sFHB}, s{sFHB}, {FH_OFF}")
    a(f"s_add_u32 s{sFHP}, s{sDW}, s{sHI}\n s_lshl_b32 s{sFHP}, s{sFHP}, 8\n s_lshl_b32 s{sDX}, s{sGI}, 1\n s_add_u32 s{sDX}, s{sDX}, s{sLO}\n s_lshl_b32 s{sDX}, s{sDX}, 2\n s_add_u32 s{sFHP}, s{sFHP}, s{sDX}\n s_add_u32 s{sFHP}, s{sFHP}, {FH_OFF}")
    a(f"v_lshlrev_b32 v{vL4}, 2, v{vLANE}")
    a(f"s_cmp_eq_u32 s{sGRP}, 1\n s_cbranch_scc1 L_Y")
    a.vm = []
    stamp(a, 0)
    a(f"s_lshl_b32 s{sPB}, s{sOWN}, 7\n s_lshl_b32 s{sDW}, s{sKQ}, 2\n s_add_u32 s{sPB}, s{sPB}, s{sDW}\n s_add_u32 s{sPB}, s{sPB}, {FP_OFF}")
    a(f"v_mul_u32_u24 v56, 48, v{vLANE}\n v_add_u32 v56, s{sFHP}, v56\n v_mov_b32 v57, s{sPB}\n v_cmp_eq_u32 vcc, 4, v{vLANE}\n s_nop 1\n v_cndmask_b32 v56, v56, v57, vcc\n v_mov_b32 v57, 0")
    a("s_mov_b64 exec, 0x1f")
    a.vmem(f"buffer_store_dword v57, v56, s[{S_WS}:{S_WS+3}], 0 offen sc1")
    a("s_mov_b64 exec, -1")
    zero_regs(a, vACC, 192)
    a.vwait_all()
    a("s_barrier")
    stamp(a, 1)
    pass_preload(a)
    a("s_branch L_passentry")
    a.label("L_Y")
    a.vm = vmY
    stamp(a, 0)
    rstamp(a, 30)
    a(f"v_lshrrev_b32 v56, 5, v{vLANE}\n v_lshlrev_b32 v56, 4, v56\n s_lshl_b32 s{sDW}, s{sW4}, 5\n v_add_u32 v56, s{sDW}, v56")
    for i in range(9):
        a.vmem(f"buffer_load_dwordx4 {vr(16+4*i,4)}, v56, s[{S_GW}:{S_GW+3}], 0 offen offset:{128*i}", tag=("G",))
    a(f"v_and_b32 v57, 31, v{vLANE}\n v_bfe_u32 v58, v{vLANE}, 1, 3\n v_lshrrev_b32 v56, 4, v56\n v_xor_b32 v58, v58, v56\n v_lshlrev_b32 v57, 7, v57\n v_lshl_add_u32 v57, v58, 4, v57")
    a(f"s_lshl_b32 s{sDW}, s{sTH}, 14\n s_lshl_b32 s{sDX}, s{sKQ}, 12\n s_add_u32 s{sDW}, s{sDW}, s{sDX}\n v_add_u32 v57, s{sDW}, v57\n v_add_u32 v0, {2*XS}, v57\n v_mov_b32 v56, 0")
    zero_regs(a, vACC, 192)
    helper_wait(a, -1)
    a("s_barrier")
    stamp(a, 1)
    for t in range(18):
        a.comment(f"Y helper tick {t}")
        helper_dma(a, t)
        if t == 0:
            lab = a.newlabel("L_noat")
            a(f"s_cmp_eq_u32 s{sW4}, 0\n s_cbranch_scc0 {lab}")
            a(f"s_and_b32 s{sT0}, s2, 63\n s_lshl_b32 s{sT0}, s{sT0}, 2\n v_mov_b32 v60, 1\n v_mov_b32 v61, s{sT0}\n s_mov_b64 exec, 1")
            a(f"buffer_atomic_add v60, v61, s[{S_DBG}:{S_DBG+3}], 0 offen sc1")
            a("s_mov_b64 exec, -1")
            a.label(lab)
        if t % 2 == 0:
            sl = t // 2
            if sl == 0: a.vwait(lambda tg: tg == ("G",))
            if sl % 3 == 2: a(f"ds_read_b128 v[52:55], v0")
            else: a(f"ds_read_b128 v[52:55], v57 offset:{(sl % 3)*XS}")
            a("s_waitcnt lgkmcnt(0)")
            for e in range(4): a(f"v_dot2c_f32_bf16 v56, v{52+e}, v{16+4*sl+e}")
            if sl == 8:
                a(f"s_lshl_b32 s{sT0}, s{sW4}, 8\n s_add_u32 s{sT0}, s{sT0}, {GATE_LDS}\n v_add_u32 v57, s{sT0}, v{vL4}\n s_nop 2\n ds_write_b32 v57, v56\n s_waitcnt lgkmcnt(0)")
        helper_wait(a, t)
        if t == 17: pass_preload(a)
        a("s_barrier")
    stamp(a, 2)
    a.label("L_passentry")
    pass_loop(a)
    a.vm = []
    a(f"s_cmp_eq_u32 s{sGRP}, 1\n s_cbranch_scc1 L_Y2")
    stamp(a, 2)
    units = [(aa, j) for aa in range(3) for j in range(4)]
    for t in range(18, 36):
        a.comment(f"X helper tick {t}")
        helper_dma(a, t)
        if t - 18 < 12: epi_unit(a, 0, *units[t - 18])
        if t == 30:
            zero_regs(a, vACC, 96)
            t3_addr_setup(a)
            flag_issue(a, S_DBG, "0", ("C",))
        if t == 32:
            a.vwait(lambda tg: tg is not None and tg[0] == "H")
            flag_store(a, sFHP, 0)
            flag_check(a, S_DBG, "0", ("C",), 4, (1 << 64) - 1)
        if t == 34:
            flag_issue(a, S_WS, f"s{sFHB}", ("F", 0))
        if t == 35:
            flag_check(a, S_WS, f"s{sFHB}", ("F", 0), 1, fh_mask(0))
            for n in range(PD): t3_loadB(a, n)
        helper_wait(a, t)
        if t == 35:
            for q in range(7): t3_readA(a, q)
        a("s_barrier")
    stamp(a, 3)
    t3_compute(a)
    stamp(a, 4)
    a(f"s_lshl_b32 s{sDW}, s{sOWN}, 2\n s_add_u32 s{sDW}, s{sDW}, s{sKQ}\n s_mul_i32 s{sDW}, s{sDW}, 12288\n s_add_u32 s{sDW}, s{sDW}, {P_OFF}")
    a("s_nop 7\n s_nop 3")
    for c in range(12):
        R = vACC + 8 * c
        P = vT3B + 4 * c
        for e in range(4): a(f"v_cvt_pk_bf16_f32 v{P+e}, v{R+2*e}, v{R+2*e+1}")
        a(f"s_add_u32 s{sT1}, s{sDW}, {1024*c}")
        a.vmem(f"buffer_store_dwordx4 {vr(P,4)}, v{vL16}, s[{S_WS}:{S_WS+3}], s{sT1} offen sc1")
    a.vwait_all()
    flag_store(a, sPB, 0)
    stamp(a, 5)
    lflush(a, 9)
    a("s_branch L_end")
    a.label("L_Y2")
    a.vm = []
    stamp(a, 3)
    SA, SB, LD = 64, 96, 128
    for t in range(36, 53):
        a.comment(f"Y helper tick {t}")
        helper_dma(a, t)
        k = t - 36
        if k < 6:
            epi_unit(a, 1, *units[2 * k]); epi_unit(a, 1, *units[2 * k + 1])
        if k in (4, 6, 8):
            aa = (k - 4) // 2
            a.vwait(lambda tg: tg == ("H", 1, aa))
            flag_store(a, sFHP, 48 * (aa + 1))
        if k == 10: flag_issue(a, S_DBG, "0", ("C",))
        if k == 12: flag_check(a, S_DBG, "0", ("C",), 4, (1 << 64) - 1)
        helper_wait(a, t)
        a("s_barrier")
    stamp(a, 4)
    a(f"v_and_b32 v56, 31, v{vLANE}\n v_lshlrev_b32 v56, 2, v56\n v_add_u32 v56, {GATE_LDS}, v56")
    for i in range(4): a(f"ds_read2_b32 {vr(16+2*i,2)}, v56 offset0:{64*i} offset1:{64*i+32}")
    a("s_waitcnt lgkmcnt(0)")
    a("v_add_f32 v16, v16, v17\n v_add_f32 v18, v18, v19\n v_add_f32 v20, v20, v21\n v_add_f32 v22, v22, v23\n v_add_f32 v16, v16, v18\n v_add_f32 v20, v20, v22\n v_add_f32 v16, v16, v20")
    a(f"v_mul_f32 v17, s{sNL2E}, v16\n v_exp_f32 v17, v17\n v_sub_f32 v18, 0, v16\n v_mul_f32 v18, s{sNL2E}, v18\n v_exp_f32 v18, v18\n v_add_f32 v17, 1.0, v17\n v_rcp_f32 v16, v17\n v_add_f32 v18, 1.0, v18\n v_rcp_f32 v17, v18")
    a(f"s_mul_i32 s{sPB}, s{sOWN}, 49152\n s_mul_i32 s{sDW}, s{sW4}, 3072\n s_add_u32 s{sPB}, s{sPB}, s{sDW}")
    if Cfg.att:
        a(f"s_lshl_b32 s{sDW}, s{sM2}, 1\n s_add_u32 s{sDW}, s{sDW}, s{sTH}\n s_lshl_b32 s{sDW}, s{sDW}, 2\n s_add_u32 s{sDW}, s{sDW}, s{sKQ}\n s_lshl_b32 s{sDW}, s{sDW}, 7\n s_add_u32 s{sDW}, s{sDW}, {FA_OFF}")
        flag_issue(a, S_WS, f"s{sDW}", ("FA",))
        flag_check(a, S_WS, f"s{sDW}", ("FA",), 1, 0xff)
        for src in range(4):
            for c in range(3):
                a(f"s_add_u32 s{sT1}, s{sPB}, {AP_OFF + src*12288 + c*1024}")
                a.vmem(f"buffer_load_dwordx4 {vr(LD+4*(3*src+c),4)}, v{vL16}, s[{S_WS}:{S_WS+3}], s{sT1} offen sc1", tag=("AP", src))
        for src in range(4):
            a.vwait(lambda tg: tg == ("AP", src))
            for c in range(3): unpack_add(a, SA + 8 * c, LD + 4 * (3 * src + c), src == 0)
        for e in range(24): a(f"v_mul_f32 v{SA+e}, v16, v{SA+e}")
    else:
        zero_regs(a, SA, 24)
    stamp(a, 5)
    a(f"s_lshl_b32 s{sDW}, s{sOWN}, 7\n s_add_u32 s{sDW}, s{sDW}, {FP_OFF}")
    flag_issue(a, S_WS, f"s{sDW}", ("FP",))
    flag_check(a, S_WS, f"s{sDW}", ("FP",), 1, 0xf)
    stamp(a, 6)
    for src in range(4):
        for c in range(3):
            a(f"s_add_u32 s{sT1}, s{sPB}, {P_OFF + src*12288 + c*1024}")
            a.vmem(f"buffer_load_dwordx4 {vr(LD+4*(3*src+c),4)}, v{vL16}, s[{S_WS}:{S_WS+3}], s{sT1} offen sc1", tag=("P", src))
    a(f"v_and_b32 v18, 31, v{vLANE}\n s_mov_b32 s{sDW}, 1152\n v_mul_u32_u24 v18, s{sDW}, v18\n v_lshrrev_b32 v19, 5, v{vLANE}\n v_lshl_add_u32 v18, v19, 3, v18")
    a(f"s_lshl_b32 s{sDW}, s{sM2}, 8\n s_lshl_b32 s{sDX}, s{sTH}, 7\n s_add_u32 s{sDW}, s{sDW}, s{sDX}\n s_lshl_b32 s{sDX}, s{sKQ}, 5\n s_add_u32 s{sDW}, s{sDW}, s{sDX}\n s_mul_i32 s{sDW}, s{sDW}, 1152")
    a(f"s_mul_i32 s{sDX}, s{sNT}, 384\n s_add_u32 s{sDW}, s{sDW}, s{sDX}\n s_mul_i32 s{sDX}, s{sW4}, 96\n s_add_u32 s{sDW}, s{sDW}, s{sDX}")
    for src in range(4):
        a.vwait(lambda tg: tg == ("P", src))
        for c in range(3): unpack_add(a, SB + 8 * c, LD + 4 * (3 * src + c), src == 0)
    for e in range(24): a(f"v_fma_f32 v{SA+e}, v17, v{SB+e}, v{SA+e}")
    for c in range(3):
        for e in range(4): a(f"v_cvt_pk_bf16_f32 v{LD+4*c+e}, v{SA+8*c+2*e}, v{SA+8*c+2*e+1}")
        a.vmem(f"buffer_store_dwordx2 {vr(LD+4*c,2)}, v18, s[{S_OUT}:{S_OUT+3}], s{sDW} offen offset:{32*c}")
        a.vmem(f"buffer_store_dwordx2 {vr(LD+4*c+2,2)}, v18, s[{S_OUT}:{S_OUT+3}], s{sDW} offen offset:{32*c+16}")
    stamp(a, 7)
    rstamp(a, 31)
    a("s_branch L_end")

from att import att_role

def gen():
    a = Asm()
    hdr = open(f"cdna_kernels/{NAME}.s.ref").read().split("; Override launch geometry")[0]
    out = hdr + f"; @launch grid=(256,1,1) block=(512,1,1) lds={LDS_TOTAL}\n"
    out += f'.amdgcn_target "amdgcn-amd-amdhsa--gfx950"\n.text\n.globl {NAME}_kernel\n.p2align 8\n.type {NAME}_kernel,@function\n{NAME}_kernel:\n'
    a("s_cmp_ge_u32 s2, 256\n s_cbranch_scc1 L_end")
    a("s_load_dwordx16 s[64:79], s[0:1], 0\n s_load_dwordx4 s[80:83], s[0:1], 64\n s_load_dwordx2 s[84:85], s[0:1], 80")
    a(f"v_lshrrev_b32 v2, 6, v0\n v_and_b32 v{vLANE}, 63, v0\n s_nop 0\n v_readfirstlane_b32 s{sWAVE}, v2")
    a(f"s_and_b32 s{sT0}, s2, 7\n s_lshr_b32 s{sT1}, s2, 3")
    a(f"s_and_b32 s{sW4}, s{sWAVE}, 3\n s_lshr_b32 s{sGRP}, s{sWAVE}, 2\n s_lshr_b32 s{sKQ}, s{sT0}, 1")
    a(f"s_mov_b32 s{sNL2E}, 0xbfb8aa3b\n v_lshlrev_b32 v{vL16}, 4, v{vLANE}")
    a(f"s_lshl_b32 s{sTS+2}, s2, 3\n s_add_u32 s{sTS+2}, s{sTS+2}, s{sWAVE}\n s_lshl_b32 s{sTS+2}, s{sTS+2}, 8\n s_add_u32 s{sTS+2}, s{sTS+2}, {TS_OFF}")
    a(f"s_cmp_ge_u32 s{sT1}, 24\n s_cbranch_scc1 L_att")
    ffn_role(a)
    a.label("L_att")
    att_role(a, sys.modules[__name__])
    a.label("L_end")
    a("s_endpgm")
    out += a.text()
    out += f'''.section .rodata,"a"
.p2align 6
.amdhsa_kernel {NAME}_kernel
  .amdhsa_next_free_vgpr 256
  .amdhsa_next_free_sgpr 102
  .amdhsa_accum_offset 256
  .amdhsa_group_segment_fixed_size 0
  .amdhsa_kernarg_size 88
  .amdhsa_user_sgpr_count 2
  .amdhsa_user_sgpr_kernarg_segment_ptr 1
  .amdhsa_system_sgpr_workgroup_id_x 1
.end_amdhsa_kernel
'''
    return out

if __name__ == "__main__":
    if "--ts" in sys.argv: Cfg.ts = True
    if "--noatt" in sys.argv: Cfg.att = False
    for x in sys.argv:
        if x.startswith("--wsoff="): Cfg.wsoff = int(x[8:], 0)
    dst = sys.argv[1] if len(sys.argv) > 1 and not sys.argv[1].startswith("--") else "k.s"
    open(dst, "w").write(gen())
```

```python
NAME="gated_mix__sliding_local_dilated__glu_gated_glu__prompt"
s=open(f'cdna_kernels/{NAME}.s').read()
L="; @launch grid=(256,1,1) block=(512,1,1) lds=163840\n"
main=f"; @launch kernel={NAME}_kernel grid=(256,1,1) block=(512,1,1) lds=163840\n"
def kern(body, nv=64):
    return f'''
.text
.globl pre_kernel
.p2align 8
.type pre_kernel,@function
pre_kernel:
    s_cmp_ge_u32 s2, 256
    s_cbranch_scc1 Lp_end
    s_load_dwordx16 s[64:79], s[0:1], 0
    s_load_dwordx4 s[80:83], s[0:1], 64
    s_load_dwordx2 s[84:85], s[0:1], 80
    s_waitcnt lgkmcnt(0)
{body}
    s_waitcnt vmcnt(0)
Lp_end:
    s_endpgm
.section .rodata,"a"
.p2align 6
.amdhsa_kernel pre_kernel
  .amdhsa_next_free_vgpr {nv}
  .amdhsa_next_free_sgpr 102
  .amdhsa_accum_offset {nv}
  .amdhsa_group_segment_fixed_size 0
  .amdhsa_kernarg_size 88
  .amdhsa_user_sgpr_count 2
  .amdhsa_user_sgpr_kernarg_segment_ptr 1
  .amdhsa_system_sgpr_workgroup_id_x 1
.end_amdhsa_kernel
'''
bufs={"x":(64,2048*1152),"wqkv":(66,576*3456),"wo":(68,576*1152),"wg":(72,576*9216),"wu":(74,576*9216),"wd":(76,4608*1152),"out":(80,2048*1152),"ws":(84,0x2800000)}
def srd(lo,size): return f"    s_mov_b32 s8, s{lo}\n    s_and_b32 s9, s{lo+1}, 0xffff\n    s_mov_b32 s10, {size}\n    s_mov_b32 s11, 0x20000\n"
def touch(names, stride, every_wg):
    b=""
    r=8
    for n in names:
        lo,size=bufs[n]
        cnt=(size+stride-1)//stride
        b+=srd(lo,size)
        if every_wg:
            b+=f"    s_mov_b32 s12, {stride}\n    v_mul_lo_u32 v1, v0, s12\n"
            for k in range((cnt+255)//256):
                b+=f"    s_mov_b32 s13, {k*256*stride}\n    buffer_load_dword v{r}, v1, s[8:11], s13 offen\n"; r=8+(r-7)%40
        else:
            b+=f"    s_lshl_b32 s12, s2, 8\n    v_add_u32 v1, s12, v0\n    s_mov_b32 s12, {stride}\n    v_mul_lo_u32 v1, v1, s12\n"
            for k in range((cnt+65535)//65536):
                b+=f"    s_mov_b32 s13, {k*65536*stride}\n    buffer_load_dword v{r}, v1, s[8:11], s13 offen\n"; r=8+(r-7)%40
    return b
pre="; @launch kernel=pre_kernel grid=(256,1,1) block=(256,1,1) lds=0\n"
inp=["x","wqkv","wo","wg","wu","wd"]
V={"p1":touch(inp+["out","ws"],65536,True),
   "p2":touch(inp,128,False),
   "p3":touch(["ws","out"],128,False),
   "p4":touch(inp+["out","ws"],4096,False),
   "p5":touch(inp,128,False)+touch(["ws","out"],128,False)}
for k,b in V.items(): open(k+'.s','w').write(s.replace(L, pre+main)+kern(b))
far="    s_add_u32 s84, s84, 0x8000000\n    s_addc_u32 s85, s85, 0\n"
bufs["f21"]=(84,21*1024*1024); bufs["f64"]=(84,64*1024*1024); bufs["f44"]=(84,44*1024*1024)
V={"c2":far+touch(["f21"],128,False),"c4":far+touch(["f64"],4096,False),"c1":far+touch(["f64"],65536,True),"c3":far+touch(["f44"],128,False)}
for k,b in V.items(): open(k+'.s','w').write(s.replace(L, pre+main)+kern(b))
code=f'''    s_getpc_b64 s[4:5]
Lp_pc:
    s_sub_u32 s4, s4, Lp_pc-{NAME}_kernel
    s_subb_u32 s5, s5, 0
    v_lshlrev_b32 v1, 7, v0
    global_load_dword v8, v1, s[4:5]
    v_add_u32 v1, 0x8000, v1
    v_cmp_gt_u32 vcc, 0xc800, v1
    s_and_saveexec_b64 s[6:7], vcc
    s_cbranch_execz Lp_s
    global_load_dword v9, v1, s[4:5]
Lp_s:
    s_mov_b64 exec, -1
'''
open('c5.s','w').write(s.replace(L, pre+main)+kern(code))
open('c6.s','w').write(s.replace(L, pre+main)+kern("    s_nop 0\n"))
```

```python
import sys
NAME="gated_mix__sliding_local_dilated__glu_gated_glu__prompt"
TS=0x3100000
s=open(sys.argv[1]).read()
L="; @launch grid=(256,1,1) block=(512,1,1) lds=163840\n"
main=f"; @launch kernel={NAME}_kernel grid=(256,1,1) block=(512,1,1) lds=163840\n"
post="; @launch kernel=post_kernel grid=(1,1,1) block=(64,1,1) lds=0\n"
def off(wg,wave,idx): return TS+(wg*8+wave)*256+(32+idx)*4
def kern(a,b):
    return f'''
.text
.globl post_kernel
.p2align 8
.type post_kernel,@function
post_kernel:
    s_cmp_ge_u32 s2, 1
    s_cbranch_scc1 Lq_end
    s_load_dwordx2 s[4:5], s[0:1], 80
    s_waitcnt lgkmcnt(0)
    s_add_u32 s6, s4, {a}
    s_addc_u32 s7, s5, 0
    s_add_u32 s8, s4, {b}
    s_addc_u32 s9, s5, 0
    s_load_dword s10, s[6:7], 0
    s_load_dword s11, s[8:9], 0
    s_memrealtime s[12:13]
    s_waitcnt lgkmcnt(0)
    s_sub_u32 s10, s11, s10
    s_min_u32 s10, s10, 20000
Lq_l:
    s_memrealtime s[14:15]
    s_waitcnt lgkmcnt(0)
    s_sub_u32 s14, s14, s12
    s_cmp_lt_u32 s14, s10
    s_cbranch_scc1 Lq_l
Lq_end:
    s_endpgm
.section .rodata,"a"
.p2align 6
.amdhsa_kernel post_kernel
  .amdhsa_next_free_vgpr 8
  .amdhsa_next_free_sgpr 32
  .amdhsa_accum_offset 8
  .amdhsa_group_segment_fixed_size 0
  .amdhsa_kernarg_size 88
  .amdhsa_user_sgpr_count 2
  .amdhsa_user_sgpr_kernarg_segment_ptr 1
  .amdhsa_system_sgpr_workgroup_id_x 1
.end_amdhsa_kernel
'''
W=10
V={"m0":(off(W,4,0),off(W,4,0)),
   "m1":(off(W,4,0),off(W,4,7)),
   "m2":(off(W,4,0),off(W,0,2)),
   "m3":(off(W,0,2),off(W,0,3)),
   "m4":(off(W,0,3),off(W,0,4)),
   "m5":(off(W,4,0),off(202,0,6)),
   }
for k,(a,b) in V.items(): open(k+'.s','w').write(s.replace(L, main+post)+kern(a,b))
PRE=TS+0x80000
prek=f'''
.text
.globl pre_kernel
.p2align 8
.type pre_kernel,@function
pre_kernel:
    s_cmp_ge_u32 s2, 1
    s_cbranch_scc1 Lr_end
    s_load_dwordx2 s[4:5], s[0:1], 80
    s_waitcnt lgkmcnt(0)
    s_mov_b32 s8, s4
    s_and_b32 s9, s5, 0xffff
    s_mov_b32 s10, 0x4000000
    s_mov_b32 s11, 0x20000
    s_memrealtime s[12:13]
    s_waitcnt lgkmcnt(0)
    v_mov_b32 v1, s12
    v_mov_b32 v2, {PRE}
    buffer_store_dword v1, v2, s[8:11], 0 offen
Lr_end:
    s_endpgm
.section .rodata,"a"
.p2align 6
.amdhsa_kernel pre_kernel
  .amdhsa_next_free_vgpr 8
  .amdhsa_next_free_sgpr 32
  .amdhsa_accum_offset 8
  .amdhsa_group_segment_fixed_size 0
  .amdhsa_kernarg_size 88
  .amdhsa_user_sgpr_count 2
  .amdhsa_user_sgpr_kernarg_segment_ptr 1
  .amdhsa_system_sgpr_workgroup_id_x 1
.end_amdhsa_kernel
'''
pre="; @launch kernel=pre_kernel grid=(1,1,1) block=(64,1,1) lds=0\n"
def x4(k): return k.replace("    s_min_u32 s10, s10, 20000","    s_lshl_b32 s10, s10, 2\n    s_min_u32 s10, s10, 20000")
open('n0.s','w').write(s.replace(L, pre+main+post)+kern(PRE,PRE)+prek)
open('n1.s','w').write(s.replace(L, pre+main+post)+x4(kern(PRE,off(W,4,0)))+prek)
open('n2.s','w').write(s.replace(L, pre+main+post)+x4(kern(PRE,off(W,0,1)))+prek)
k=x4(kern(off(W,4,7),off(W,4,7))).replace("    s_sub_u32 s10, s11, s10\n","    s_sub_u32 s10, s12, s10\n")
open('n3.s','w').write(s.replace(L, pre+main+post)+k+prek)
k=kern(PRE,PRE).replace("    s_sub_u32 s10, s11, s10\n","    s_sub_u32 s10, s12, s10\n")
open('n4.s','w').write(s.replace(L, pre+main+post)+k+prek)
```
